```python
import torch

def _softmax(x, axis=-1):
    return torch.softmax(x, dim=axis)
def _gelu(x):
    return torch.nn.functional.gelu(x, approximate="tanh")
def _silu(x):
    return torch.nn.functional.silu(x)
def _sigmoid(x):
    return torch.sigmoid(x)
def _layernorm(x, axis=-1, eps=1e-5):
    m = x.mean(dim=axis, keepdim=True)
    v = x.var(dim=axis, keepdim=True, unbiased=False)
    return (x - m) / torch.sqrt(v + eps)
def _scatter_add(tgt, idx, src, axis=0):
    return tgt.clone().index_add_(axis, idx, src)
def _segment_sum(src, seg, n):
    out = torch.zeros((n,) + src.shape[1:], dtype=src.dtype)
    return out.index_add_(0, seg, src)
def _pad(x, pw):
    flat = tuple(v for pair in reversed(pw) for v in pair)
    return torch.nn.functional.pad(x, flat)

kernel_name = 'gated_mix__compressed_kv_cla__swiglu_ffn__decode'

def setup_inputs():

    _w = (lambda a: (lambda t: t.to(torch.bfloat16) if t.is_floating_point() else t)(torch.as_tensor(a)))
    def _A_setup():
        B, H, Sq, Sk, D, M = 1, 32, 1, 8192, 128, 512
        Dc = 4 * D
        return {
            "x": _w((lambda *s: torch.randn(*s, dtype=torch.bfloat16) * 0.05)(B, Sq, M)),
            "c_kv": _w((lambda *s: torch.randn(*s, dtype=torch.bfloat16) * 0.8)(B, Sk, Dc)),
            "w_q": _w((lambda *s: torch.randn(*s, dtype=torch.bfloat16) * 6.4)(M, H, D) * (M ** -0.5)),
            "w_uk": _w((lambda *s: torch.randn(*s, dtype=torch.bfloat16) * 6.4)(Dc, H, D) * (Dc ** -0.5)),
            "w_uv": _w((lambda *s: torch.randn(*s, dtype=torch.bfloat16) * 0.8)(Dc, H, D) * (Dc ** -0.5)),
            "w_o": _w((lambda *s: torch.randn(*s, dtype=torch.bfloat16) * 0.8)(H, D, M) * ((H * D) ** -0.5)),
        }
    _A_in = _A_setup()

    def _B_setup():
        B, S, D, F = 1, 1, 512, 1376
        return {
            "x": _w((lambda *s: torch.randn(*s, dtype=torch.bfloat16) * 0.05)(B, S, D)),
            "w_gate": _w((lambda *s: torch.randn(*s, dtype=torch.bfloat16) * 0.1)(D, F)),
            "w_up": _w((lambda *s: torch.randn(*s, dtype=torch.bfloat16) * 0.1)(D, F)),
            "w_down": _w((lambda *s: torch.randn(*s, dtype=torch.bfloat16) * 0.1)(F, D)),
        }
    _B_in = _B_setup()

    return {
        "A_x": _A_in["x"],
        "A_c_kv": _A_in["c_kv"],
        "A_w_q": _A_in["w_q"],
        "A_w_uk": _A_in["w_uk"],
        "A_w_uv": _A_in["w_uv"],
        "A_w_o": _A_in["w_o"],
        "B_x": _B_in["x"],
        "B_w_gate": _B_in["w_gate"],
        "B_w_up": _B_in["w_up"],
        "B_w_down": _B_in["w_down"],
        "gate_w": _w((lambda *s: torch.randn(*s, dtype=torch.bfloat16) * 0.05)(512) * 16.0),
    }

def reference(A_x, A_c_kv, A_w_q, A_w_uk, A_w_uv, A_w_o, B_x, B_w_gate, B_w_up, B_w_down, gate_w):
    def _A_ref(x, c_kv, w_q, w_uk, w_uv, w_o):
        B, Sq, M = x.shape[0], x.shape[1], x.shape[2]
        Sk = c_kv.shape[1]
        H, D = w_q.shape[1], w_q.shape[2]
        q = torch.einsum("bqm,mhd->bhqd", x, w_q)
        k = torch.einsum("bkc,chd->bhkd", c_kv, w_uk)
        v = torch.einsum("bkc,chd->bhkd", c_kv, w_uv)
        scores = torch.einsum("bhqd,bhkd->bhqk", q, k) * (D ** -0.5)
        off = Sk - Sq
        qi = torch.arange(Sq)[:, None]
        kj = torch.arange(Sk)[None, :]
        cmask = kj <= (qi + off)
        scores = torch.where(cmask[None, None], scores, -1e9)
        p = _softmax(scores, axis=-1)
        ctx = torch.einsum("bhqk,bhkd->bhqd", p, v)
        return torch.einsum("bhqd,hdm->bqm", ctx, w_o)

    def _B_ref(x, w_gate, w_up, w_down):
        g = _silu(x @ w_gate)
        u = x @ w_up
        return (g * u) @ w_down

    x = A_x
    g = _sigmoid((x * gate_w).sum(-1, keepdims=True))
    a = _A_ref(x, A_c_kv, A_w_q, A_w_uk, A_w_uv, A_w_o)
    b = _B_ref(x, B_w_gate, B_w_up, B_w_down)
    return g * a + (1 - g) * b
```

```python
import sys

OUT = sys.argv[1] if len(sys.argv) > 1 else "gated_mix__compressed_kv_cla__swiglu_ffn__decode.s"

QP   = 0x000000
GUP  = 0x040000
QABS = 0x080000
BP   = 0x0A0000
AM   = 0x0C0000
CP   = 0x0E0000
OPP  = 0x120000
AP   = 0x200000
WS_SIZE = 0x1000000
NSPLIT = 128
KPW = 8192 // NSPLIT

L = []
def e(s): L.append("    " + s)
def lab(s): L.append(s + ":")
def comment(s): L.append("    ; " + s)

def srd(dst, ptr, size):
    e(f"s_mov_b32 s{dst}, s{ptr}")
    e(f"s_mov_b32 s{dst+1}, s{ptr+1}")
    e(f"s_mov_b32 s{dst+2}, {size}")
    e(f"s_mov_b32 s{dst+3}, 0x00020000")

def prologue(name, nwg):
    L.append(".globl %s" % name)
    L.append(".p2align 8")
    L.append(".type %s,@function" % name)
    lab(name)
    e(f"s_cmp_ge_u32 s2, {nwg}")
    e(f"s_cbranch_scc1 {name}_end")
    e("s_load_dwordx16 s[16:31], s[0:1], 0")
    e("s_load_dwordx8 s[32:39], s[0:1], 64")
    e("s_load_dwordx4 s[40:43], s[0:1], 96")
    e("s_waitcnt lgkmcnt(0)")
    srd(48, 42, WS_SIZE)

def epilogue(name):
    lab(name + "_end")
    e("s_endpgm")

def bf16_round(vd, vs):
    e(f"v_cvt_pk_bf16_f32 v{vd}, v{vs}, v{vs}")
    e(f"v_lshlrev_b32 v{vd}, 16, v{vd}")

def gemv_rows(name):
    e("v_lshrrev_b32 v1, 4, v0")
    e("v_and_b32 v2, 15, v0")
    e("v_add_u32 v3, s53, v1")
    e("v_mul_lo_u32 v3, v3, s52")
    e("v_lshl_add_u32 v3, v2, 4, v3")
    e("v_add_u32 v3, s54, v3")
    e("s_lshl_b32 s56, s52, 4")
    for p in range(4):
        e(f"buffer_load_dwordx4 v[{8+4*p}:{11+4*p}], v3, s[44:47], 0 offen")
        if p < 3:
            e("v_add_u32 v3, s56, v3")
    e("s_waitcnt lgkmcnt(0)")
    e("s_barrier")
    e("v_lshlrev_b32 v4, 2, v1")
    for p in range(4):
        e(f"ds_read_b32 v{24+p}, v4 offset:{64*p}")
    for j in range(8):
        e(f"v_mov_b32 v{28+j}, 0")
    e("s_waitcnt vmcnt(0) lgkmcnt(0)")
    for p in range(4):
        for d in range(4):
            e(f"v_lshlrev_b32 v36, 16, v{8+4*p+d}")
            e(f"v_and_b32 v37, 0xffff0000, v{8+4*p+d}")
            e(f"v_fmac_f32 v{28+2*d}, v36, v{24+p}")
            e(f"v_fmac_f32 v{29+2*d}, v37, v{24+p}")
    e("v_lshlrev_b32 v4, 9, v1")
    e("v_lshl_add_u32 v4, v2, 5, v4")
    e("ds_write_b128 v4, v[28:31] offset:1024")
    e("ds_write_b128 v4, v[32:35] offset:1040")
    e("s_waitcnt lgkmcnt(0)")
    e("s_barrier")
    e("v_cmp_gt_u32 vcc, 128, v0")
    e("s_and_saveexec_b64 s[58:59], vcc")
    e(f"s_cbranch_execz {name}_end")
    e("v_lshlrev_b32 v4, 2, v0")
    for i in range(16):
        e(f"ds_read_b32 v{8+i}, v4 offset:{1024+512*i}")
    e("s_waitcnt lgkmcnt(0)")
    for st in (8, 4, 2, 1):
        for i in range(st):
            e(f"v_add_f32 v{8+i}, v{8+i}, v{8+i+st}")
    e("v_add_u32 v4, s55, v4")
    e("buffer_store_dword v8, v4, s[48:51], 0 offen")

def kd(name, vgpr=128, sgpr=96):
    L.append(".amdhsa_kernel %s" % name)
    L.append("  .amdhsa_next_free_vgpr %d" % vgpr)
    L.append("  .amdhsa_next_free_sgpr %d" % sgpr)
    L.append("  .amdhsa_accum_offset %d" % ((vgpr + 3) // 4 * 4))
    L.append("  .amdhsa_group_segment_fixed_size 0")
    L.append("  .amdhsa_kernarg_size 112")
    L.append("  .amdhsa_user_sgpr_count 2")
    L.append("  .amdhsa_user_sgpr_kernarg_segment_ptr 1")
    L.append("  .amdhsa_system_sgpr_workgroup_id_x 1")
    L.append(".end_amdhsa_kernel")

def k1():
    name = "k1_kernel"
    prologue(name, 432)
    e("s_cmp_ge_u32 s2, 256")
    e("s_cbranch_scc1 k1_ffn")
    srd(44, 20, 4194304)
    e("s_movk_i32 s52, 8192")
    e("s_lshr_b32 s57, s2, 5")
    e("s_lshl_b32 s53, s57, 6")
    e("s_and_b32 s54, s2, 31")
    e("s_lshl_b32 s54, s54, 8")
    e("s_lshl_b32 s55, s57, 14")
    e("s_add_u32 s55, s55, s54")
    e("s_add_u32 s55, s55, s54")
    e(f"s_add_u32 s55, s55, {QP}")
    e("s_branch k1_go")
    lab("k1_ffn")
    e("s_sub_u32 s57, s2, 256")
    e("s_cmp_ge_u32 s57, 88")
    e("s_cselect_b32 s60, 1, 0")
    e("s_cselect_b32 s44, s32, s30")
    e("s_cselect_b32 s45, s33, s31")
    e("s_mov_b32 s46, 1409024")
    e("s_mov_b32 s47, 0x00020000")
    e("s_mul_i32 s61, s60, 88")
    e("s_sub_u32 s57, s57, s61")
    e("s_mul_i32 s61, s57, 373")
    e("s_lshr_b32 s61, s61, 12")
    e("s_mul_i32 s62, s61, 11")
    e("s_sub_u32 s62, s57, s62")
    e("s_movk_i32 s52, 2752")
    e("s_lshl_b32 s53, s61, 6")
    e("s_lshl_b32 s54, s62, 8")
    e("s_mul_i32 s55, s61, 11264")
    e("s_mul_i32 s63, s60, 5632")
    e("s_add_u32 s55, s55, s63")
    e("s_lshl_b32 s63, s62, 9")
    e("s_add_u32 s55, s55, s63")
    e(f"s_add_u32 s55, s55, {GUP}")
    lab("k1_go")
    srd(60, 16, 1024)
    e("v_add_u32 v5, s53, v0")
    e("v_lshlrev_b32 v5, 1, v5")
    e("buffer_load_ushort v6, v5, s[60:63], 0 offen")
    e("v_lshlrev_b32 v4, 2, v0")
    e("s_waitcnt vmcnt(0)")
    e("v_lshlrev_b32 v6, 16, v6")
    e("v_cmp_gt_u32 vcc, 64, v0")
    e("s_and_saveexec_b64 s[58:59], vcc")
    e("ds_write_b32 v4, v6")
    e("s_mov_b64 exec, s[58:59]")
    gemv_rows(name)
    epilogue(name)

def k2():
    name = "k2_kernel"
    prologue(name, 344)
    e("s_cmp_ge_u32 s2, 256")
    e("s_cbranch_scc1 k2_ffn")
    e("s_lshr_b32 s57, s2, 3")
    e("s_and_b32 s60, s2, 7")
    srd(44, 22, 4194304)
    e("v_lshrrev_b32 v1, 4, v0")
    e("v_and_b32 v2, 15, v0")
    e("s_lshl_b32 s61, s57, 9")
    e(f"s_add_u32 s61, s61, {QP}")
    e("v_lshl_add_u32 v3, v2, 5, s61")
    for p in range(8):
        e(f"v_add_u32 v4, {p*16384}, v3" if p else "v_mov_b32 v4, v3")
        e(f"buffer_load_dwordx4 v[{8+8*p}:{11+8*p}], v4, s[48:51], 0 offen")
        e(f"buffer_load_dwordx4 v[{12+8*p}:{15+8*p}], v4, s[48:51], 0 offen offset:16")
    e("s_lshl_b32 s62, s60, 6")
    e("v_add_u32 v5, s62, v1")
    e("v_lshlrev_b32 v5, 13, v5")
    e("v_lshl_add_u32 v5, v2, 4, v5")
    e("s_lshl_b32 s63, s57, 8")
    e("v_add_u32 v5, s63, v5")
    for p in range(4):
        e(f"buffer_load_dwordx4 v[{80+4*p}:{83+4*p}], v5, s[44:47], 0 offen")
        if p < 3:
            e("v_add_u32 v5, 0x20000, v5")
    e("s_waitcnt vmcnt(4)")
    for p in range(1, 8):
        for j in range(8):
            e(f"v_add_f32 v{8+j}, v{8+j}, v{8+8*p+j}")
    for j in range(8):
        bf16_round(8 + j, 8 + j)
    e("s_waitcnt vmcnt(0)")
    for p in range(4):
        e(f"v_mov_b32 v{100+p}, 0")
        for d in range(4):
            e(f"v_lshlrev_b32 v36, 16, v{80+4*p+d}")
            e(f"v_and_b32 v37, 0xffff0000, v{80+4*p+d}")
            e(f"v_fmac_f32 v{100+p}, v36, v{8+2*d}")
            e(f"v_fmac_f32 v{100+p}, v37, v{9+2*d}")
    e("s_nop 1")
    for r in (8, 4, 2, 1):
        for p in range(4):
            e(f"v_add_f32_dpp v{100+p}, v{100+p}, v{100+p} row_ror:{r} row_mask:0xf bank_mask:0xf")
        e("s_nop 1")
    for p in range(4):
        e(f"v_cvt_pk_bf16_f32 v{100+p}, v{100+p}, v{100+p}")
    e("s_lshl_b32 s61, s57, 10")
    e(f"s_add_u32 s61, s61, {QABS}")
    e("s_lshl_b32 s62, s60, 7")
    e("s_add_u32 s61, s61, s62")
    e("v_lshl_add_u32 v5, v1, 1, s61")
    e("v_cmp_eq_u32 vcc, 0, v2")
    e("s_and_saveexec_b64 s[58:59], vcc")
    for p in range(4):
        e(f"buffer_store_short v{100+p}, v5, s[48:51], 0 offen offset:{32*p}")
    e("s_branch k2_kernel_end")
    lab("k2_ffn")
    e("s_sub_u32 s57, s2, 256")
    e("s_and_b32 s62, s57, 3")
    e("s_lshr_b32 s61, s57, 2")
    srd(44, 34, 1409024)
    e("s_movk_i32 s52, 1024")
    e("s_lshl_b32 s53, s61, 6")
    e("s_lshl_b32 s54, s62, 8")
    e("s_lshl_b32 s55, s61, 11")
    e("s_lshl_b32 s63, s62, 9")
    e("s_add_u32 s55, s55, s63")
    e(f"s_add_u32 s55, s55, {BP}")
    e("v_add_u32 v5, s53, v0")
    e("v_lshlrev_b32 v6, 2, v5")
    e(f"v_add_u32 v6, {GUP}, v6")
    for p in range(8):
        e(f"buffer_load_dword v{8+p}, v6, s[48:51], 0 offen" + (f" offset:{0}" if False else ""))
        e(f"buffer_load_dword v{16+p}, v6, s[48:51], 0 offen offset:{5632-4096}" if False else f"v_add_u32 v7, 5632, v6")
        e(f"buffer_load_dword v{16+p}, v7, s[48:51], 0 offen")
        if p < 7:
            e("v_add_u32 v6, 11264, v6")
    e("s_waitcnt vmcnt(0)")
    for p in range(1, 8):
        e(f"v_add_f32 v8, v8, v{8+p}")
        e(f"v_add_f32 v16, v16, v{16+p}")
    bf16_round(8, 8)
    bf16_round(16, 16)
    e("v_mul_f32 v9, 0xbfb8aa3b, v8")
    e("v_exp_f32 v9, v9")
    e("s_nop 0")
    e("v_add_f32 v9, 1.0, v9")
    e("v_rcp_f32 v9, v9")
    e("s_nop 0")
    e("v_mul_f32 v9, v8, v9")
    bf16_round(9, 9)
    e("v_mul_f32 v9, v9, v16")
    bf16_round(9, 9)
    e("v_cmp_gt_u32 vcc, 1376, v5")
    e("s_nop 1")
    e("v_cndmask_b32 v9, 0, v9, vcc")
    e("v_lshlrev_b32 v4, 2, v0")
    e("v_cmp_gt_u32 vcc, 64, v0")
    e("s_and_saveexec_b64 s[58:59], vcc")
    e("ds_write_b32 v4, v9")
    e("s_mov_b64 exec, s[58:59]")
    gemv_rows(name)
    epilogue(name)

CSTR = 1040
PSTR = KPW * 2 + 16
LDS_ST = 0
LDS_P = 2048
LDS_Q = 8192
LDS_C = LDS_Q + 32 * CSTR
LDS_K3 = LDS_C + KPW * CSTR

def k3():
    name = "k3_kernel"
    prologue(name, NSPLIT)
    srd(44, 18, 8388608)
    e("v_lshrrev_b32 v1, 6, v0")
    e("v_and_b32 v2, 63, v0")
    e("s_nop 0")
    e("v_readfirstlane_b32 s60, v1")
    e(f"s_mul_i32 s61, s2, {KPW*1024}")
    e("s_lshl_b32 s62, s60, 14")
    e("s_add_u32 s61, s61, s62")
    e("v_lshlrev_b32 v3, 4, v2")
    e(f"s_mul_i32 s63, s60, {16*CSTR}")
    e(f"s_add_u32 s63, s63, {LDS_C}")
    for r in range(16):
        e(f"s_add_u32 s64, s63, {r*CSTR}")
        e("s_mov_b32 m0, s64")
        e(f"s_add_u32 s65, s61, {r*1024}")
        e("buffer_load_dwordx4 v3, s[44:47], s65 offen lds")
    e(f"s_mul_i32 s63, s60, {8*CSTR}")
    e(f"s_add_u32 s63, s63, {LDS_Q}")
    e("s_lshl_b32 s61, s60, 13")
    e(f"s_add_u32 s61, s61, {QABS}")
    for r in range(8):
        e(f"s_add_u32 s64, s63, {r*CSTR}")
        e("s_mov_b32 m0, s64")
        e(f"s_add_u32 s65, s61, {r*1024}")
        e("buffer_load_dwordx4 v3, s[48:51], s65 offen lds")
    e("v_and_b32 v4, 15, v2")
    e("v_lshrrev_b32 v5, 4, v2")
    e("v_lshlrev_b32 v6, 4, v1")
    e("v_add_u32 v6, v6, v4")
    e(f"v_mul_u32_u24 v6, {CSTR}, v6")
    e("v_lshl_add_u32 v6, v5, 4, v6")
    e(f"v_add_u32 v6, {LDS_C}, v6")
    e(f"v_mul_u32_u24 v7, {CSTR}, v4")
    e("v_lshl_add_u32 v7, v5, 4, v7")
    e(f"v_add_u32 v7, {LDS_Q}, v7")
    for i in range(8):
        e(f"v_mov_b32 v{16+i}, 0")
    e("s_waitcnt vmcnt(0)")
    e("s_barrier")
    for t in range(16):
        e(f"ds_read_b128 v[{32+4*(t%2)*3}:{35+4*(t%2)*3}], v6 offset:{64*t}")
        e(f"ds_read_b128 v[{36+4*(t%2)*3}:{39+4*(t%2)*3}], v7 offset:{64*t}")
        e(f"ds_read_b128 v[{40+4*(t%2)*3}:{43+4*(t%2)*3}], v7 offset:{64*t+16*CSTR}")
        e("s_waitcnt lgkmcnt(0)")
        b = 32 + 12 * (t % 2)
        e(f"v_mfma_f32_16x16x32_bf16 v[16:19], v[{b}:{b+3}], v[{b+4}:{b+7}], v[16:19]")
        e(f"v_mfma_f32_16x16x32_bf16 v[20:23], v[{b}:{b+3}], v[{b+8}:{b+11}], v[20:23]")
    e("s_nop 15")
    e("v_max_f32 v24, v16, v17")
    e("v_max3_f32 v24, v24, v18, v19")
    e("v_max_f32 v25, v20, v21")
    e("v_max3_f32 v25, v25, v22, v23")
    e("v_xor_b32 v26, 16, v2")
    e("v_lshlrev_b32 v26, 2, v26")
    e("ds_bpermute_b32 v27, v26, v24")
    e("ds_bpermute_b32 v28, v26, v25")
    e("s_waitcnt lgkmcnt(0)")
    e("v_max_f32 v24, v24, v27")
    e("v_max_f32 v25, v25, v28")
    e("v_xor_b32 v26, 32, v2")
    e("v_lshlrev_b32 v26, 2, v26")
    e("ds_bpermute_b32 v27, v26, v24")
    e("ds_bpermute_b32 v28, v26, v25")
    e("s_waitcnt lgkmcnt(0)")
    e("v_max_f32 v24, v24, v27")
    e("v_max_f32 v25, v25, v28")
    e("v_lshlrev_b32 v26, 7, v1")
    e("v_lshl_add_u32 v26, v4, 2, v26")
    e(f"ds_write_b32 v26, v24 offset:{LDS_ST}")
    e(f"ds_write_b32 v26, v25 offset:{LDS_ST+64}")
    e("s_waitcnt lgkmcnt(0)")
    e("s_barrier")
    e("v_lshlrev_b32 v26, 2, v4")
    for w in range(4):
        e(f"ds_read_b32 v{40+w}, v26 offset:{LDS_ST+128*w}")
        e(f"ds_read_b32 v{44+w}, v26 offset:{LDS_ST+128*w+64}")
    e("s_waitcnt lgkmcnt(0)")
    e("v_max_f32 v24, v40, v41")
    e("v_max3_f32 v24, v24, v42, v43")
    e("v_max_f32 v25, v44, v45")
    e("v_max3_f32 v25, v25, v46, v47")
    C1 = 0x3e0293ee
    e("s_mov_b32 s66, C1VAL")
    for i in range(4):
        e(f"v_sub_f32 v{16+i}, v{16+i}, v24")
        e(f"v_sub_f32 v{20+i}, v{20+i}, v25")
    for i in range(8):
        e(f"v_mul_f32 v{16+i}, s66, v{16+i}")
    for i in range(8):
        e(f"v_exp_f32 v{16+i}, v{16+i}")
    e("s_nop 1")
    e("v_add_f32 v27, v16, v17")
    e("v_add_f32 v28, v18, v19")
    e("v_add_f32 v27, v27, v28")
    e("v_add_f32 v28, v20, v21")
    e("v_add_f32 v29, v22, v23")
    e("v_add_f32 v28, v28, v29")
    e("v_cvt_pk_bf16_f32 v32, v16, v17")
    e("v_cvt_pk_bf16_f32 v33, v18, v19")
    e("v_cvt_pk_bf16_f32 v34, v20, v21")
    e("v_cvt_pk_bf16_f32 v35, v22, v23")
    e(f"v_mul_u32_u24 v36, {PSTR}, v4")
    e("v_lshlrev_b32 v37, 5, v1")
    e("v_add_u32 v36, v36, v37")
    e("v_lshl_add_u32 v36, v5, 3, v36")
    e(f"ds_write_b64 v36, v[32:33] offset:{LDS_P}")
    e(f"ds_write_b64 v36, v[34:35] offset:{LDS_P+16*PSTR}")
    e("v_xor_b32 v26, 16, v2")
    e("v_lshlrev_b32 v26, 2, v26")
    e("ds_bpermute_b32 v29, v26, v27")
    e("ds_bpermute_b32 v30, v26, v28")
    e("s_waitcnt lgkmcnt(0)")
    e("v_add_f32 v27, v27, v29")
    e("v_add_f32 v28, v28, v30")
    e("v_xor_b32 v26, 32, v2")
    e("v_lshlrev_b32 v26, 2, v26")
    e("ds_bpermute_b32 v29, v26, v27")
    e("ds_bpermute_b32 v30, v26, v28")
    e("s_waitcnt lgkmcnt(0)")
    e("v_add_f32 v27, v27, v29")
    e("v_add_f32 v28, v28, v30")
    e("v_lshlrev_b32 v26, 7, v1")
    e("v_lshl_add_u32 v26, v4, 2, v26")
    e(f"ds_write_b32 v26, v27 offset:{LDS_ST+512}")
    e(f"ds_write_b32 v26, v28 offset:{LDS_ST+512+64}")
    e("s_waitcnt lgkmcnt(0)")
    e("s_barrier")
    e("v_lshlrev_b32 v26, 2, v4")
    for w in range(4):
        e(f"ds_read_b32 v{40+w}, v26 offset:{LDS_ST+512+128*w}")
        e(f"ds_read_b32 v{44+w}, v26 offset:{LDS_ST+512+128*w+64}")
    e("s_waitcnt lgkmcnt(0)")
    e("v_add_f32 v40, v40, v41")
    e("v_add_f32 v42, v42, v43")
    e("v_add_f32 v40, v40, v42")
    e("v_add_f32 v44, v44, v45")
    e("v_add_f32 v46, v46, v47")
    e("v_add_f32 v44, v44, v46")
    e("s_lshl_b32 s61, s2, 8")
    e(f"s_add_u32 s61, s61, {AM}")
    e("v_lshl_add_u32 v26, v4, 3, s61")
    e("v_cmp_gt_u32 vcc, 16, v0")
    e("s_and_saveexec_b64 s[58:59], vcc")
    e("v_mov_b32 v41, v40")
    e("v_mov_b32 v40, v24")
    e("v_mov_b32 v45, v44")
    e("v_mov_b32 v44, v25")
    e("buffer_store_dwordx2 v[40:41], v26, s[48:51], 0 offen")
    e("buffer_store_dwordx2 v[44:45], v26, s[48:51], 0 offen offset:128")
    e("s_mov_b64 exec, s[58:59]")
    e("v_and_b32 v4, 31, v2")
    e("v_lshrrev_b32 v5, 5, v2")
    e(f"v_mul_u32_u24 v6, {PSTR}, v4")
    e("v_lshl_add_u32 v6, v5, 4, v6")
    e(f"v_add_u32 v6, {LDS_P}, v6")
    e("v_and_b32 v7, 15, v2")
    e("v_lshrrev_b32 v8, 2, v7")
    e("v_lshl_add_u32 v8, v5, 3, v8")
    e(f"v_mul_u32_u24 v8, {CSTR}, v8")
    e("v_and_b32 v9, 3, v7")
    e("v_lshlrev_b32 v9, 3, v9")
    e("v_bfe_u32 v10, v2, 4, 1")
    e("v_lshl_add_u32 v9, v10, 5, v9")
    e("v_add_u32 v8, v8, v9")
    e("v_lshl_add_u32 v8, v1, 8, v8")
    e(f"v_add_u32 v8, {LDS_C}, v8")
    for i in range(64):
        e(f"v_mov_b32 v{64+i}, 0")
    for j in range(KPW // 16):
        e(f"ds_read_b128 v[12:15], v6 offset:{32*j}")
        for n in range(4):
            e(f"ds_read_b64_tr_b16 v[{16+4*n}:{17+4*n}], v8 offset:{16*j*CSTR + 64*n}")
            e(f"ds_read_b64_tr_b16 v[{18+4*n}:{19+4*n}], v8 offset:{(16*j+4)*CSTR + 64*n}")
        e("s_waitcnt lgkmcnt(0)")
        for n in range(4):
            e(f"v_mfma_f32_32x32x16_bf16 v[{64+16*n}:{79+16*n}], v[12:15], v[{16+4*n}:{19+4*n}], v[{64+16*n}:{79+16*n}]")
    e("s_nop 15")
    e("s_nop 3")
    e("s_lshl_b32 s61, s2, 16")
    e(f"s_add_u32 s61, s61, {AP}")
    e("v_lshlrev_b32 v9, 13, v5")
    e("v_lshl_add_u32 v9, v4, 2, v9")
    e("v_lshl_add_u32 v9, v1, 9, v9")
    e("v_add_u32 v9, s61, v9")
    for n in range(4):
        for i in range(16):
            h = 8 * (i // 4) + (i % 4)
            off = h * 2048 + n * 128
            if off < 4096:
                e(f"buffer_store_dword v{64+16*n+i}, v9, s[48:51], 0 offen offset:{off}")
            else:
                e(f"v_add_u32 v10, {off}, v9")
                e(f"buffer_store_dword v{64+16*n+i}, v10, s[48:51], 0 offen")
    epilogue(name)

def k4():
    name = "k4_kernel"
    prologue(name, 256)
    e("s_lshr_b32 s57, s2, 3")
    e("s_and_b32 s60, s2, 7")
    srd(44, 24, 4194304)
    e("s_movk_i32 s52, 8192")
    e("s_lshl_b32 s53, s60, 6")
    e("s_lshl_b32 s54, s57, 8")
    e("s_lshl_b32 s55, s60, 14")
    e("s_lshl_b32 s61, s57, 9")
    e("s_add_u32 s55, s55, s61")
    e(f"s_add_u32 s55, s55, {CP}")
    e("v_lshrrev_b32 v1, 6, v0")
    e("v_and_b32 v2, 63, v0")
    e("s_lshl_b32 s61, s57, 3")
    e(f"s_add_u32 s61, s61, {AM}")
    e("v_lshl_add_u32 v3, v2, 8, s61")
    e("buffer_load_dwordx2 v[4:5], v3, s[48:51], 0 offen")
    e("v_add_u32 v3, 16384, v3")
    e("buffer_load_dwordx2 v[6:7], v3, s[48:51], 0 offen")
    e("s_waitcnt vmcnt(0)")
    e("v_max_f32 v8, v4, v6")
    e("s_nop 1")
    for r in (8, 4, 2, 1):
        e(f"v_max_f32_dpp v8, v8, v8 row_ror:{r} row_mask:0xf bank_mask:0xf")
        e("s_nop 1")
    e("v_readlane_b32 s61, v8, 0")
    e("v_readlane_b32 s62, v8, 16")
    e("v_readlane_b32 s63, v8, 32")
    e("v_readlane_b32 s64, v8, 48")
    e("s_nop 1")
    e("v_mov_b32 v8, s61")
    e("v_max_f32 v8, s62, v8")
    e("v_max_f32 v8, s63, v8")
    e("v_max_f32 v8, s64, v8")
    e("s_mov_b32 s66, C1VAL")
    e("v_sub_f32 v4, v4, v8")
    e("v_sub_f32 v6, v6, v8")
    e("v_mul_f32 v4, s66, v4")
    e("v_mul_f32 v6, s66, v6")
    e("v_exp_f32 v4, v4")
    e("v_exp_f32 v6, v6")
    e("s_nop 1")
    e("v_mul_f32 v9, v4, v5")
    e("v_fmac_f32 v9, v6, v7")
    e("s_nop 1")
    for r in (8, 4, 2, 1):
        e(f"v_add_f32_dpp v9, v9, v9 row_ror:{r} row_mask:0xf bank_mask:0xf")
        e("s_nop 1")
    e("v_readlane_b32 s61, v9, 0")
    e("v_readlane_b32 s62, v9, 16")
    e("v_readlane_b32 s63, v9, 32")
    e("v_readlane_b32 s64, v9, 48")
    e("s_nop 1")
    e("v_mov_b32 v9, s61")
    e("v_add_f32 v9, s62, v9")
    e("v_add_f32 v9, s63, v9")
    e("v_add_f32 v9, s64, v9")
    e("v_rcp_f32 v9, v9")
    e("s_nop 1")
    e("v_mul_f32 v4, v4, v9")
    e("v_mul_f32 v6, v6, v9")
    e("v_readfirstlane_b32 s60, v1")
    e("s_and_b32 s61, s2, 7")
    e("s_lshl_b32 s61, s61, 8")
    e("s_lshl_b32 s62, s57, 11")
    e("s_add_u32 s61, s61, s62")
    e(f"s_add_u32 s61, s61, {AP}")
    e("s_lshl_b32 s62, s60, 21")
    e("s_add_u32 s61, s61, s62")
    e("v_lshl_add_u32 v3, v2, 2, s61")
    for i in range(32):
        e(f"buffer_load_dword v{16+i}, v3, s[48:51], 0 offen")
        if i < 31:
            e("v_add_u32 v3, 0x10000, v3")
    e("s_lshl_b32 s62, s60, 5")
    e("s_and_b32 s63, s62, 63")
    e("s_cmp_ge_u32 s60, 2")
    e("v_cndmask_b32 v10, v4, v6, scc" if False else "s_cselect_b64 vcc, -1, 0")
    e("s_nop 1")
    e("v_cndmask_b32 v10, v4, v6, vcc")
    e("v_mov_b32 v11, 0")
    e("s_waitcnt vmcnt(0)")
    for i in range(32):
        e(f"s_add_u32 s64, s63, {i}")
        e("s_nop 0")
        e("v_readlane_b32 s65, v10, s64")
        e("s_nop 1")
        e(f"v_fmac_f32 v11, s65, v{16+i}")
    e("v_lshlrev_b32 v3, 2, v0")
    e("ds_write_b32 v3, v11 offset:16384")
    e("s_waitcnt lgkmcnt(0)")
    e("s_barrier")
    e("v_cmp_gt_u32 vcc, 64, v0")
    e("s_and_saveexec_b64 s[58:59], vcc")
    e("ds_read_b32 v12, v3 offset:16384")
    e("ds_read_b32 v13, v3 offset:16640")
    e("ds_read_b32 v14, v3 offset:16896")
    e("ds_read_b32 v15, v3 offset:17152")
    e("s_waitcnt lgkmcnt(0)")
    e("v_add_f32 v12, v12, v13")
    e("v_add_f32 v14, v14, v15")
    e("v_add_f32 v12, v12, v14")
    e("ds_write_b32 v3, v12")
    e("s_mov_b64 exec, s[58:59]")
    gemv_rows(name)
    epilogue(name)

def k5():
    name = "k5_kernel"
    prologue(name, 256)
    e("s_and_b32 s62, s2, 3")
    e("s_lshr_b32 s61, s2, 2")
    srd(44, 26, 4194304)
    e("s_movk_i32 s52, 1024")
    e("s_lshl_b32 s53, s61, 6")
    e("s_lshl_b32 s54, s62, 8")
    e("s_lshl_b32 s55, s61, 11")
    e("s_lshl_b32 s63, s62, 9")
    e("s_add_u32 s55, s55, s63")
    e(f"s_add_u32 s55, s55, {OPP}")
    e("v_add_u32 v5, s53, v0")
    e("v_lshlrev_b32 v6, 2, v5")
    e(f"v_add_u32 v6, {CP}, v6")
    for p in range(8):
        e(f"buffer_load_dword v{8+p}, v6, s[48:51], 0 offen")
        if p < 7:
            e("v_add_u32 v6, 16384, v6")
    e("s_waitcnt vmcnt(0)")
    for p in range(1, 8):
        e(f"v_add_f32 v8, v8, v{8+p}")
    bf16_round(8, 8)
    e("v_lshlrev_b32 v4, 2, v0")
    e("v_cmp_gt_u32 vcc, 64, v0")
    e("s_and_saveexec_b64 s[58:59], vcc")
    e("ds_write_b32 v4, v8")
    e("s_mov_b64 exec, s[58:59]")
    gemv_rows(name)
    epilogue(name)

def k6():
    name = "k6_kernel"
    prologue(name, 2)
    srd(44, 16, 1024)
    srd(60, 36, 1024)
    srd(64, 38, 1024)
    e("v_and_b32 v2, 63, v0")
    e("v_lshlrev_b32 v3, 4, v2")
    e("buffer_load_dwordx4 v[4:7], v3, s[44:47], 0 offen")
    e("buffer_load_dwordx4 v[8:11], v3, s[60:63], 0 offen")
    e("s_lshl_b32 s3, s2, 8")
    e("v_add_u32 v1, s3, v0")
    e("v_lshlrev_b32 v12, 2, v1")
    e(f"v_add_u32 v13, {OPP}, v12")
    for p in range(64):
        e(f"buffer_load_dword v{32+p}, v13, s[48:51], 0 offen" + (f" offset:{2048*(p%2)}" if p % 2 else ""))
        if p % 2 == 1 and p < 63:
            e("v_add_u32 v13, 4096, v13")
    e("s_waitcnt vmcnt(62)")
    e("v_mov_b32 v14, 0")
    for d in range(4):
        e(f"v_lshlrev_b32 v15, 16, v{4+d}")
        e(f"v_lshlrev_b32 v16, 16, v{8+d}")
        e("v_mul_f32 v15, v15, v16")
        bf16_round(15, 15)
        e("v_add_f32 v14, v14, v15")
        e(f"v_and_b32 v15, 0xffff0000, v{4+d}")
        e(f"v_and_b32 v16, 0xffff0000, v{8+d}")
        e("v_mul_f32 v15, v15, v16")
        bf16_round(15, 15)
        e("v_add_f32 v14, v14, v15")
    e("s_nop 1")
    for r in (8, 4, 2, 1):
        e(f"v_add_f32_dpp v14, v14, v14 row_ror:{r} row_mask:0xf bank_mask:0xf")
        e("s_nop 1")
    e("v_readlane_b32 s4, v14, 0")
    e("v_readlane_b32 s5, v14, 16")
    e("v_readlane_b32 s6, v14, 32")
    e("v_readlane_b32 s7, v14, 48")
    e("s_nop 1")
    e("v_mov_b32 v14, s4")
    e("v_add_f32 v14, s5, v14")
    e("v_add_f32 v14, s6, v14")
    e("v_add_f32 v14, s7, v14")
    bf16_round(14, 14)
    e("v_mul_f32 v14, 0xbfb8aa3b, v14")
    e("v_exp_f32 v14, v14")
    e("s_nop 0")
    e("v_add_f32 v14, 1.0, v14")
    e("v_rcp_f32 v14, v14")
    e("s_nop 0")
    bf16_round(14, 14)
    e("s_waitcnt vmcnt(0)")
    for st in (32, 16, 8, 4, 2, 1):
        for i in range(st):
            e(f"v_add_f32 v{32+i}, v{32+i}, v{32+i+st}")
    bf16_round(32, 32)
    e(f"v_add_u32 v13, {BP}, v12")
    for p in range(22):
        e(f"buffer_load_dword v{40+p}, v13, s[48:51], 0 offen" + (f" offset:{2048*(p%2)}" if p % 2 else ""))
        if p % 2 == 1 and p < 21:
            e("v_add_u32 v13, 4096, v13")
    e("s_waitcnt vmcnt(0)")
    for p in range(1, 22):
        e(f"v_add_f32 v40, v40, v{40+p}")
    bf16_round(40, 40)
    e("v_mul_f32 v32, v14, v32")
    bf16_round(32, 32)
    e("v_sub_f32 v15, 1.0, v14")
    bf16_round(15, 15)
    e("v_mul_f32 v40, v15, v40")
    bf16_round(40, 40)
    e("v_add_f32 v32, v32, v40")
    e("v_cvt_pk_bf16_f32 v32, v32, v32")
    e("v_lshlrev_b32 v12, 1, v1")
    e("buffer_store_short v32, v12, s[64:67], 0 offen")
    epilogue(name)

import struct, math
c1 = (128 ** -0.5) * math.log2(math.e)
C1HEX = "0x%08x" % struct.unpack("<I", struct.pack("<f", c1))[0]

hdr = []
hdr.append("; @launch kernel=k1_kernel grid=(432,1,1) block=(256,1,1) lds=16384")
hdr.append("; @launch kernel=k2_kernel grid=(344,1,1) block=(256,1,1) lds=16384")
hdr.append(f"; @launch kernel=k3_kernel grid=({NSPLIT},1,1) block=(256,1,1) lds={LDS_K3}")
hdr.append("; @launch kernel=k4_kernel grid=(256,1,1) block=(256,1,1) lds=20480")
hdr.append("; @launch kernel=k5_kernel grid=(256,1,1) block=(256,1,1) lds=16384")
hdr.append("; @launch kernel=k6_kernel grid=(2,1,1) block=(256,1,1) lds=0")
hdr.append('.amdgcn_target "amdgcn-amd-amdhsa--gfx950"')
hdr.append(".text")
k1(); k2(); k3(); k4(); k5(); k6()
L.append('.section .rodata,"a"')
for n in ("k1_kernel", "k2_kernel", "k3_kernel", "k4_kernel", "k5_kernel", "k6_kernel"):
    L.append(".p2align 6")
    kd(n)
txt = "\n".join(hdr + L) + "\n"
txt = txt.replace("C1VAL", C1HEX)
open(OUT, "w").write(txt)
print("wrote", OUT, len(txt))
```

```python
import sys

OUT = sys.argv[1] if len(sys.argv) > 1 else "gated_mix__compressed_kv_cla__swiglu_ffn__decode.s"

QP   = 0x000000
GUP  = 0x040000
QABS = 0x080000
BP   = 0x0A0000
AM   = 0x0C0000
CP   = 0x0E0000
OPP  = 0x120000
AP   = 0x200000
WS_SIZE = 0x1000000
NSPLIT = 128
NPF = 342
KPW = 8192 // NSPLIT

L = []
def e(s): L.append("    " + s)
def lab(s): L.append(s + ":")
def comment(s): L.append("    ; " + s)

def srd(dst, ptr, size):
    e(f"s_mov_b32 s{dst}, s{ptr}")
    e(f"s_mov_b32 s{dst+1}, s{ptr+1}")
    e(f"s_mov_b32 s{dst+2}, {size}")
    e(f"s_mov_b32 s{dst+3}, 0x00020000")

def prologue(name, nwg):
    L.append(".globl %s" % name)
    L.append(".p2align 8")
    L.append(".type %s,@function" % name)
    lab(name)
    e(f"s_cmp_ge_u32 s2, {nwg}")
    e(f"s_cbranch_scc1 {name}_end")
    e("s_load_dwordx16 s[16:31], s[0:1], 0")
    e("s_load_dwordx8 s[32:39], s[0:1], 64")
    e("s_load_dwordx4 s[40:43], s[0:1], 96")
    e("s_waitcnt lgkmcnt(0)")
    srd(48, 42, WS_SIZE)

def epilogue(name):
    lab(name + "_end")
    e("s_endpgm")

def bf16_round(vd, vs):
    e(f"v_cvt_pk_bf16_f32 v{vd}, v{vs}, v{vs}")
    e(f"v_lshlrev_b32 v{vd}, 16, v{vd}")

def gemv_rows(name):
    e("v_lshrrev_b32 v1, 4, v0")
    e("v_and_b32 v2, 15, v0")
    e("v_add_u32 v3, s53, v1")
    e("v_mul_lo_u32 v3, v3, s52")
    e("v_lshl_add_u32 v3, v2, 4, v3")
    e("v_add_u32 v3, s54, v3")
    e("s_lshl_b32 s56, s52, 4")
    for p in range(4):
        e(f"buffer_load_dwordx4 v[{8+4*p}:{11+4*p}], v3, s[44:47], 0 offen")
        if p < 3:
            e("v_add_u32 v3, s56, v3")
    e("s_waitcnt lgkmcnt(0)")
    e("s_barrier")
    e("v_lshlrev_b32 v4, 2, v1")
    for p in range(4):
        e(f"ds_read_b32 v{24+p}, v4 offset:{64*p}")
    for j in range(8):
        e(f"v_mov_b32 v{28+j}, 0")
    e("s_waitcnt vmcnt(0) lgkmcnt(0)")
    for p in range(4):
        for d in range(4):
            e(f"v_lshlrev_b32 v36, 16, v{8+4*p+d}")
            e(f"v_and_b32 v37, 0xffff0000, v{8+4*p+d}")
            e(f"v_fmac_f32 v{28+2*d}, v36, v{24+p}")
            e(f"v_fmac_f32 v{29+2*d}, v37, v{24+p}")
    e("v_lshlrev_b32 v4, 9, v1")
    e("v_lshl_add_u32 v4, v2, 5, v4")
    e("ds_write_b128 v4, v[28:31] offset:1024")
    e("ds_write_b128 v4, v[32:35] offset:1040")
    e("s_waitcnt lgkmcnt(0)")
    e("s_barrier")
    e("v_cmp_gt_u32 vcc, 128, v0")
    e("s_and_saveexec_b64 s[58:59], vcc")
    e(f"s_cbranch_execz {name}_end")
    e("v_lshlrev_b32 v4, 2, v0")
    for i in range(16):
        e(f"ds_read_b32 v{8+i}, v4 offset:{1024+512*i}")
    e("s_waitcnt lgkmcnt(0)")
    for st in (8, 4, 2, 1):
        for i in range(st):
            e(f"v_add_f32 v{8+i}, v{8+i}, v{8+i+st}")
    e("v_add_u32 v4, s55, v4")
    e("buffer_store_dword v8, v4, s[48:51], 0 offen")

def kd(name, vgpr=128, sgpr=96):
    L.append(".amdhsa_kernel %s" % name)
    L.append("  .amdhsa_next_free_vgpr %d" % vgpr)
    L.append("  .amdhsa_next_free_sgpr %d" % sgpr)
    L.append("  .amdhsa_accum_offset %d" % ((vgpr + 3) // 4 * 4))
    L.append("  .amdhsa_group_segment_fixed_size 0")
    L.append("  .amdhsa_kernarg_size 112")
    L.append("  .amdhsa_user_sgpr_count 2")
    L.append("  .amdhsa_user_sgpr_kernarg_segment_ptr 1")
    L.append("  .amdhsa_system_sgpr_workgroup_id_x 1")
    L.append(".end_amdhsa_kernel")

def k1():
    name = "k1_kernel"
    prologue(name, 432 + NPF)
    e("s_cmp_ge_u32 s2, 432")
    e("s_cbranch_scc1 k1_pf")
    e("s_cmp_ge_u32 s2, 256")
    e("s_cbranch_scc1 k1_ffn")
    srd(44, 20, 4194304)
    e("s_movk_i32 s52, 8192")
    e("s_lshr_b32 s57, s2, 5")
    e("s_lshl_b32 s53, s57, 6")
    e("s_and_b32 s54, s2, 31")
    e("s_lshl_b32 s54, s54, 8")
    e("s_lshl_b32 s55, s57, 14")
    e("s_add_u32 s55, s55, s54")
    e("s_add_u32 s55, s55, s54")
    e(f"s_add_u32 s55, s55, {QP}")
    e("s_branch k1_go")
    lab("k1_ffn")
    e("s_sub_u32 s57, s2, 256")
    e("s_cmp_ge_u32 s57, 88")
    e("s_cselect_b32 s60, 1, 0")
    e("s_cselect_b32 s44, s32, s30")
    e("s_cselect_b32 s45, s33, s31")
    e("s_mov_b32 s46, 1409024")
    e("s_mov_b32 s47, 0x00020000")
    e("s_mul_i32 s61, s60, 88")
    e("s_sub_u32 s57, s57, s61")
    e("s_mul_i32 s61, s57, 373")
    e("s_lshr_b32 s61, s61, 12")
    e("s_mul_i32 s62, s61, 11")
    e("s_sub_u32 s62, s57, s62")
    e("s_movk_i32 s52, 2752")
    e("s_lshl_b32 s53, s61, 6")
    e("s_lshl_b32 s54, s62, 8")
    e("s_mul_i32 s55, s61, 11264")
    e("s_mul_i32 s63, s60, 5632")
    e("s_add_u32 s55, s55, s63")
    e("s_lshl_b32 s63, s62, 9")
    e("s_add_u32 s55, s55, s63")
    e(f"s_add_u32 s55, s55, {GUP}")
    lab("k1_go")
    srd(60, 16, 1024)
    e("v_add_u32 v5, s53, v0")
    e("v_lshlrev_b32 v5, 1, v5")
    e("buffer_load_ushort v6, v5, s[60:63], 0 offen")
    e("v_lshlrev_b32 v4, 2, v0")
    e("s_waitcnt vmcnt(0)")
    e("v_lshlrev_b32 v6, 16, v6")
    e("v_cmp_gt_u32 vcc, 64, v0")
    e("s_and_saveexec_b64 s[58:59], vcc")
    e("ds_write_b32 v4, v6")
    e("s_mov_b64 exec, s[58:59]")
    gemv_rows(name)
    e("s_branch k1_kernel_end")
    lab("k1_pf")
    e("s_sub_u32 s57, s2, 432")
    e("s_mov_b32 s44, s18")
    e("s_mov_b32 s45, s19")
    e("s_mov_b32 s46, 8388608")
    e("s_mov_b32 s60, s57")
    e("s_cmp_ge_u32 s57, 128")
    e("s_cselect_b32 s44, s22, s44")
    e("s_cselect_b32 s45, s23, s45")
    e("s_cselect_b32 s46, 4194304, s46")
    e("s_cselect_b32 s61, 128, 0")
    e("s_cmp_ge_u32 s57, 192")
    e("s_cselect_b32 s44, s24, s44")
    e("s_cselect_b32 s45, s25, s45")
    e("s_cselect_b32 s61, 192, s61")
    e("s_cmp_ge_u32 s57, 256")
    e("s_cselect_b32 s44, s26, s44")
    e("s_cselect_b32 s45, s27, s45")
    e("s_cselect_b32 s61, 256, s61")
    e("s_cmp_ge_u32 s57, 320")
    e("s_cselect_b32 s44, s34, s44")
    e("s_cselect_b32 s45, s35, s45")
    e("s_cselect_b32 s46, 1409024, s46")
    e("s_cselect_b32 s61, 320, s61")
    e("s_mov_b32 s47, 0x00020000")
    e("s_sub_u32 s60, s57, s61")
    e("s_lshl_b32 s60, s60, 16")
    e("v_lshlrev_b32 v1, 4, v0")
    e("v_add_u32 v1, s60, v1")
    for i in range(16):
        e(f"buffer_load_dwordx4 v[{8+4*i}:{11+4*i}], v1, s[44:47], 0 offen")
        e("v_add_u32 v1, 4096, v1")
    e("s_waitcnt vmcnt(0)")
    epilogue(name)

def k2():
    name = "k2_kernel"
    prologue(name, 344)
    e("s_cmp_ge_u32 s2, 256")
    e("s_cbranch_scc1 k2_ffn")
    e("s_lshr_b32 s57, s2, 3")
    e("s_and_b32 s60, s2, 7")
    srd(44, 22, 4194304)
    e("v_lshrrev_b32 v1, 4, v0")
    e("v_and_b32 v2, 15, v0")
    e("s_lshl_b32 s61, s57, 9")
    e(f"s_add_u32 s61, s61, {QP}")
    e("v_lshl_add_u32 v3, v2, 5, s61")
    for p in range(8):
        e(f"v_add_u32 v4, {p*16384}, v3" if p else "v_mov_b32 v4, v3")
        e(f"buffer_load_dwordx4 v[{8+8*p}:{11+8*p}], v4, s[48:51], 0 offen")
        e(f"buffer_load_dwordx4 v[{12+8*p}:{15+8*p}], v4, s[48:51], 0 offen offset:16")
    e("s_lshl_b32 s62, s60, 6")
    e("v_add_u32 v5, s62, v1")
    e("v_lshlrev_b32 v5, 13, v5")
    e("v_lshl_add_u32 v5, v2, 4, v5")
    e("s_lshl_b32 s63, s57, 8")
    e("v_add_u32 v5, s63, v5")
    for p in range(4):
        e(f"buffer_load_dwordx4 v[{80+4*p}:{83+4*p}], v5, s[44:47], 0 offen")
        if p < 3:
            e("v_add_u32 v5, 0x20000, v5")
    e("s_waitcnt vmcnt(4)")
    for p in range(1, 8):
        for j in range(8):
            e(f"v_add_f32 v{8+j}, v{8+j}, v{8+8*p+j}")
    for j in range(8):
        bf16_round(8 + j, 8 + j)
    e("s_waitcnt vmcnt(0)")
    for p in range(4):
        e(f"v_mov_b32 v{100+p}, 0")
        for d in range(4):
            e(f"v_lshlrev_b32 v36, 16, v{80+4*p+d}")
            e(f"v_and_b32 v37, 0xffff0000, v{80+4*p+d}")
            e(f"v_fmac_f32 v{100+p}, v36, v{8+2*d}")
            e(f"v_fmac_f32 v{100+p}, v37, v{9+2*d}")
    e("s_nop 1")
    for r in (8, 4, 2, 1):
        for p in range(4):
            e(f"v_add_f32_dpp v{100+p}, v{100+p}, v{100+p} row_ror:{r} row_mask:0xf bank_mask:0xf")
        e("s_nop 1")
    for p in range(4):
        e(f"v_cvt_pk_bf16_f32 v{100+p}, v{100+p}, v{100+p}")
    e("s_lshl_b32 s61, s57, 10")
    e(f"s_add_u32 s61, s61, {QABS}")
    e("s_lshl_b32 s62, s60, 7")
    e("s_add_u32 s61, s61, s62")
    e("v_lshl_add_u32 v5, v1, 1, s61")
    e("v_cmp_eq_u32 vcc, 0, v2")
    e("s_and_saveexec_b64 s[58:59], vcc")
    for p in range(4):
        e(f"buffer_store_short v{100+p}, v5, s[48:51], 0 offen offset:{32*p}")
    e("s_branch k2_kernel_end")
    lab("k2_ffn")
    e("s_sub_u32 s57, s2, 256")
    e("s_and_b32 s62, s57, 3")
    e("s_lshr_b32 s61, s57, 2")
    srd(44, 34, 1409024)
    e("s_movk_i32 s52, 1024")
    e("s_lshl_b32 s53, s61, 6")
    e("s_lshl_b32 s54, s62, 8")
    e("s_lshl_b32 s55, s61, 11")
    e("s_lshl_b32 s63, s62, 9")
    e("s_add_u32 s55, s55, s63")
    e(f"s_add_u32 s55, s55, {BP}")
    e("v_add_u32 v5, s53, v0")
    e("v_lshlrev_b32 v6, 2, v5")
    e(f"v_add_u32 v6, {GUP}, v6")
    for p in range(8):
        e(f"buffer_load_dword v{8+p}, v6, s[48:51], 0 offen" + (f" offset:{0}" if False else ""))
        e(f"buffer_load_dword v{16+p}, v6, s[48:51], 0 offen offset:{5632-4096}" if False else f"v_add_u32 v7, 5632, v6")
        e(f"buffer_load_dword v{16+p}, v7, s[48:51], 0 offen")
        if p < 7:
            e("v_add_u32 v6, 11264, v6")
    e("s_waitcnt vmcnt(0)")
    for p in range(1, 8):
        e(f"v_add_f32 v8, v8, v{8+p}")
        e(f"v_add_f32 v16, v16, v{16+p}")
    bf16_round(8, 8)
    bf16_round(16, 16)
    e("v_mul_f32 v9, 0xbfb8aa3b, v8")
    e("v_exp_f32 v9, v9")
    e("s_nop 0")
    e("v_add_f32 v9, 1.0, v9")
    e("v_rcp_f32 v9, v9")
    e("s_nop 0")
    e("v_mul_f32 v9, v8, v9")
    bf16_round(9, 9)
    e("v_mul_f32 v9, v9, v16")
    bf16_round(9, 9)
    e("v_cmp_gt_u32 vcc, 1376, v5")
    e("s_nop 1")
    e("v_cndmask_b32 v9, 0, v9, vcc")
    e("v_lshlrev_b32 v4, 2, v0")
    e("v_cmp_gt_u32 vcc, 64, v0")
    e("s_and_saveexec_b64 s[58:59], vcc")
    e("ds_write_b32 v4, v9")
    e("s_mov_b64 exec, s[58:59]")
    gemv_rows(name)
    epilogue(name)

CSTR = 1040
PSTR = KPW * 2 + 16
LDS_ST = 0
LDS_P = 2048
LDS_Q = 8192
LDS_C = LDS_Q + 32 * CSTR
LDS_K3 = LDS_C + KPW * CSTR

def k3():
    name = "k3_kernel"
    prologue(name, NSPLIT)
    srd(44, 18, 8388608)
    e("v_lshrrev_b32 v1, 6, v0")
    e("v_and_b32 v2, 63, v0")
    e("s_nop 0")
    e("v_readfirstlane_b32 s60, v1")
    e(f"s_mul_i32 s61, s2, {KPW*1024}")
    e("s_lshl_b32 s62, s60, 14")
    e("s_add_u32 s61, s61, s62")
    e("v_lshlrev_b32 v3, 4, v2")
    e(f"s_mul_i32 s63, s60, {16*CSTR}")
    e(f"s_add_u32 s63, s63, {LDS_C}")
    for r in range(16):
        e(f"s_add_u32 s64, s63, {r*CSTR}")
        e("s_mov_b32 m0, s64")
        e(f"s_add_u32 s65, s61, {r*1024}")
        e("buffer_load_dwordx4 v3, s[44:47], s65 offen lds")
    e(f"s_mul_i32 s63, s60, {8*CSTR}")
    e(f"s_add_u32 s63, s63, {LDS_Q}")
    e("s_lshl_b32 s61, s60, 13")
    e(f"s_add_u32 s61, s61, {QABS}")
    for r in range(8):
        e(f"s_add_u32 s64, s63, {r*CSTR}")
        e("s_mov_b32 m0, s64")
        e(f"s_add_u32 s65, s61, {r*1024}")
        e("buffer_load_dwordx4 v3, s[48:51], s65 offen lds")
    e("v_and_b32 v4, 15, v2")
    e("v_lshrrev_b32 v5, 4, v2")
    e("v_lshlrev_b32 v6, 4, v1")
    e("v_add_u32 v6, v6, v4")
    e(f"v_mul_u32_u24 v6, {CSTR}, v6")
    e("v_lshl_add_u32 v6, v5, 4, v6")
    e(f"v_add_u32 v6, {LDS_C}, v6")
    e(f"v_mul_u32_u24 v7, {CSTR}, v4")
    e("v_lshl_add_u32 v7, v5, 4, v7")
    e(f"v_add_u32 v7, {LDS_Q}, v7")
    for i in range(8):
        e(f"v_mov_b32 v{16+i}, 0")
    e("s_waitcnt vmcnt(0)")
    e("s_barrier")
    for t in range(16):
        e(f"ds_read_b128 v[{32+4*(t%2)*3}:{35+4*(t%2)*3}], v6 offset:{64*t}")
        e(f"ds_read_b128 v[{36+4*(t%2)*3}:{39+4*(t%2)*3}], v7 offset:{64*t}")
        e(f"ds_read_b128 v[{40+4*(t%2)*3}:{43+4*(t%2)*3}], v7 offset:{64*t+16*CSTR}")
        e("s_waitcnt lgkmcnt(0)")
        b = 32 + 12 * (t % 2)
        e(f"v_mfma_f32_16x16x32_bf16 v[16:19], v[{b}:{b+3}], v[{b+4}:{b+7}], v[16:19]")
        e(f"v_mfma_f32_16x16x32_bf16 v[20:23], v[{b}:{b+3}], v[{b+8}:{b+11}], v[20:23]")
    e("s_nop 15")
    e("v_max_f32 v24, v16, v17")
    e("v_max3_f32 v24, v24, v18, v19")
    e("v_max_f32 v25, v20, v21")
    e("v_max3_f32 v25, v25, v22, v23")
    e("v_xor_b32 v26, 16, v2")
    e("v_lshlrev_b32 v26, 2, v26")
    e("ds_bpermute_b32 v27, v26, v24")
    e("ds_bpermute_b32 v28, v26, v25")
    e("s_waitcnt lgkmcnt(0)")
    e("v_max_f32 v24, v24, v27")
    e("v_max_f32 v25, v25, v28")
    e("v_xor_b32 v26, 32, v2")
    e("v_lshlrev_b32 v26, 2, v26")
    e("ds_bpermute_b32 v27, v26, v24")
    e("ds_bpermute_b32 v28, v26, v25")
    e("s_waitcnt lgkmcnt(0)")
    e("v_max_f32 v24, v24, v27")
    e("v_max_f32 v25, v25, v28")
    e("v_lshlrev_b32 v26, 7, v1")
    e("v_lshl_add_u32 v26, v4, 2, v26")
    e(f"ds_write_b32 v26, v24 offset:{LDS_ST}")
    e(f"ds_write_b32 v26, v25 offset:{LDS_ST+64}")
    e("s_waitcnt lgkmcnt(0)")
    e("s_barrier")
    e("v_lshlrev_b32 v26, 2, v4")
    for w in range(4):
        e(f"ds_read_b32 v{40+w}, v26 offset:{LDS_ST+128*w}")
        e(f"ds_read_b32 v{44+w}, v26 offset:{LDS_ST+128*w+64}")
    e("s_waitcnt lgkmcnt(0)")
    e("v_max_f32 v24, v40, v41")
    e("v_max3_f32 v24, v24, v42, v43")
    e("v_max_f32 v25, v44, v45")
    e("v_max3_f32 v25, v25, v46, v47")
    C1 = 0x3e0293ee
    e("s_mov_b32 s66, C1VAL")
    for i in range(4):
        e(f"v_sub_f32 v{16+i}, v{16+i}, v24")
        e(f"v_sub_f32 v{20+i}, v{20+i}, v25")
    for i in range(8):
        e(f"v_mul_f32 v{16+i}, s66, v{16+i}")
    for i in range(8):
        e(f"v_exp_f32 v{16+i}, v{16+i}")
    e("s_nop 1")
    e("v_add_f32 v27, v16, v17")
    e("v_add_f32 v28, v18, v19")
    e("v_add_f32 v27, v27, v28")
    e("v_add_f32 v28, v20, v21")
    e("v_add_f32 v29, v22, v23")
    e("v_add_f32 v28, v28, v29")
    e("v_cvt_pk_bf16_f32 v32, v16, v17")
    e("v_cvt_pk_bf16_f32 v33, v18, v19")
    e("v_cvt_pk_bf16_f32 v34, v20, v21")
    e("v_cvt_pk_bf16_f32 v35, v22, v23")
    e(f"v_mul_u32_u24 v36, {PSTR}, v4")
    e("v_lshlrev_b32 v37, 5, v1")
    e("v_add_u32 v36, v36, v37")
    e("v_lshl_add_u32 v36, v5, 3, v36")
    e(f"ds_write_b64 v36, v[32:33] offset:{LDS_P}")
    e(f"ds_write_b64 v36, v[34:35] offset:{LDS_P+16*PSTR}")
    e("v_xor_b32 v26, 16, v2")
    e("v_lshlrev_b32 v26, 2, v26")
    e("ds_bpermute_b32 v29, v26, v27")
    e("ds_bpermute_b32 v30, v26, v28")
    e("s_waitcnt lgkmcnt(0)")
    e("v_add_f32 v27, v27, v29")
    e("v_add_f32 v28, v28, v30")
    e("v_xor_b32 v26, 32, v2")
    e("v_lshlrev_b32 v26, 2, v26")
    e("ds_bpermute_b32 v29, v26, v27")
    e("ds_bpermute_b32 v30, v26, v28")
    e("s_waitcnt lgkmcnt(0)")
    e("v_add_f32 v27, v27, v29")
    e("v_add_f32 v28, v28, v30")
    e("v_lshlrev_b32 v26, 7, v1")
    e("v_lshl_add_u32 v26, v4, 2, v26")
    e(f"ds_write_b32 v26, v27 offset:{LDS_ST+512}")
    e(f"ds_write_b32 v26, v28 offset:{LDS_ST+512+64}")
    e("s_waitcnt lgkmcnt(0)")
    e("s_barrier")
    e("v_lshlrev_b32 v26, 2, v4")
    for w in range(4):
        e(f"ds_read_b32 v{40+w}, v26 offset:{LDS_ST+512+128*w}")
        e(f"ds_read_b32 v{44+w}, v26 offset:{LDS_ST+512+128*w+64}")
    e("s_waitcnt lgkmcnt(0)")
    e("v_add_f32 v40, v40, v41")
    e("v_add_f32 v42, v42, v43")
    e("v_add_f32 v40, v40, v42")
    e("v_add_f32 v44, v44, v45")
    e("v_add_f32 v46, v46, v47")
    e("v_add_f32 v44, v44, v46")
    e("s_lshl_b32 s61, s2, 8")
    e(f"s_add_u32 s61, s61, {AM}")
    e("v_lshl_add_u32 v26, v4, 3, s61")
    e("v_cmp_gt_u32 vcc, 16, v0")
    e("s_and_saveexec_b64 s[58:59], vcc")
    e("v_mov_b32 v41, v40")
    e("v_mov_b32 v40, v24")
    e("v_mov_b32 v45, v44")
    e("v_mov_b32 v44, v25")
    e("buffer_store_dwordx2 v[40:41], v26, s[48:51], 0 offen")
    e("buffer_store_dwordx2 v[44:45], v26, s[48:51], 0 offen offset:128")
    e("s_mov_b64 exec, s[58:59]")
    e("v_and_b32 v4, 31, v2")
    e("v_lshrrev_b32 v5, 5, v2")
    e(f"v_mul_u32_u24 v6, {PSTR}, v4")
    e("v_lshl_add_u32 v6, v5, 4, v6")
    e(f"v_add_u32 v6, {LDS_P}, v6")
    e("v_and_b32 v7, 15, v2")
    e("v_lshrrev_b32 v8, 2, v7")
    e("v_lshl_add_u32 v8, v5, 3, v8")
    e(f"v_mul_u32_u24 v8, {CSTR}, v8")
    e("v_and_b32 v9, 3, v7")
    e("v_lshlrev_b32 v9, 3, v9")
    e("v_bfe_u32 v10, v2, 4, 1")
    e("v_lshl_add_u32 v9, v10, 5, v9")
    e("v_add_u32 v8, v8, v9")
    e("v_lshl_add_u32 v8, v1, 8, v8")
    e(f"v_add_u32 v8, {LDS_C}, v8")
    for i in range(64):
        e(f"v_mov_b32 v{64+i}, 0")
    for j in range(KPW // 16):
        e(f"ds_read_b128 v[12:15], v6 offset:{32*j}")
        for n in range(4):
            e(f"ds_read_b64_tr_b16 v[{16+4*n}:{17+4*n}], v8 offset:{16*j*CSTR + 64*n}")
            e(f"ds_read_b64_tr_b16 v[{18+4*n}:{19+4*n}], v8 offset:{(16*j+4)*CSTR + 64*n}")
        e("s_waitcnt lgkmcnt(0)")
        for n in range(4):
            e(f"v_mfma_f32_32x32x16_bf16 v[{64+16*n}:{79+16*n}], v[12:15], v[{16+4*n}:{19+4*n}], v[{64+16*n}:{79+16*n}]")
    e("s_nop 15")
    e("s_nop 3")
    e("s_lshl_b32 s61, s2, 16")
    e(f"s_add_u32 s61, s61, {AP}")
    e("v_lshlrev_b32 v9, 13, v5")
    e("v_lshl_add_u32 v9, v4, 2, v9")
    e("v_lshl_add_u32 v9, v1, 9, v9")
    e("v_add_u32 v9, s61, v9")
    for n in range(4):
        for i in range(16):
            h = 8 * (i // 4) + (i % 4)
            off = h * 2048 + n * 128
            if off < 4096:
                e(f"buffer_store_dword v{64+16*n+i}, v9, s[48:51], 0 offen offset:{off}")
            else:
                e(f"v_add_u32 v10, {off}, v9")
                e(f"buffer_store_dword v{64+16*n+i}, v10, s[48:51], 0 offen")
    epilogue(name)

def k4():
    name = "k4_kernel"
    prologue(name, 256)
    e("s_lshr_b32 s57, s2, 3")
    e("s_and_b32 s60, s2, 7")
    srd(44, 24, 4194304)
    e("s_movk_i32 s52, 8192")
    e("s_lshl_b32 s53, s60, 6")
    e("s_lshl_b32 s54, s57, 8")
    e("s_lshl_b32 s55, s60, 14")
    e("s_lshl_b32 s61, s57, 9")
    e("s_add_u32 s55, s55, s61")
    e(f"s_add_u32 s55, s55, {CP}")
    e("v_lshrrev_b32 v1, 6, v0")
    e("v_and_b32 v2, 63, v0")
    e("s_lshl_b32 s61, s57, 3")
    e(f"s_add_u32 s61, s61, {AM}")
    e("v_lshl_add_u32 v3, v2, 8, s61")
    e("buffer_load_dwordx2 v[4:5], v3, s[48:51], 0 offen")
    e("v_add_u32 v3, 16384, v3")
    e("buffer_load_dwordx2 v[6:7], v3, s[48:51], 0 offen")
    e("s_waitcnt vmcnt(0)")
    e("v_max_f32 v8, v4, v6")
    e("s_nop 1")
    for r in (8, 4, 2, 1):
        e(f"v_max_f32_dpp v8, v8, v8 row_ror:{r} row_mask:0xf bank_mask:0xf")
        e("s_nop 1")
    e("v_readlane_b32 s61, v8, 0")
    e("v_readlane_b32 s62, v8, 16")
    e("v_readlane_b32 s63, v8, 32")
    e("v_readlane_b32 s64, v8, 48")
    e("s_nop 1")
    e("v_mov_b32 v8, s61")
    e("v_max_f32 v8, s62, v8")
    e("v_max_f32 v8, s63, v8")
    e("v_max_f32 v8, s64, v8")
    e("s_mov_b32 s66, C1VAL")
    e("v_sub_f32 v4, v4, v8")
    e("v_sub_f32 v6, v6, v8")
    e("v_mul_f32 v4, s66, v4")
    e("v_mul_f32 v6, s66, v6")
    e("v_exp_f32 v4, v4")
    e("v_exp_f32 v6, v6")
    e("s_nop 1")
    e("v_mul_f32 v9, v4, v5")
    e("v_fmac_f32 v9, v6, v7")
    e("s_nop 1")
    for r in (8, 4, 2, 1):
        e(f"v_add_f32_dpp v9, v9, v9 row_ror:{r} row_mask:0xf bank_mask:0xf")
        e("s_nop 1")
    e("v_readlane_b32 s61, v9, 0")
    e("v_readlane_b32 s62, v9, 16")
    e("v_readlane_b32 s63, v9, 32")
    e("v_readlane_b32 s64, v9, 48")
    e("s_nop 1")
    e("v_mov_b32 v9, s61")
    e("v_add_f32 v9, s62, v9")
    e("v_add_f32 v9, s63, v9")
    e("v_add_f32 v9, s64, v9")
    e("v_rcp_f32 v9, v9")
    e("s_nop 1")
    e("v_mul_f32 v4, v4, v9")
    e("v_mul_f32 v6, v6, v9")
    e("v_readfirstlane_b32 s60, v1")
    e("s_and_b32 s61, s2, 7")
    e("s_lshl_b32 s61, s61, 8")
    e("s_lshl_b32 s62, s57, 11")
    e("s_add_u32 s61, s61, s62")
    e(f"s_add_u32 s61, s61, {AP}")
    e("s_lshl_b32 s62, s60, 21")
    e("s_add_u32 s61, s61, s62")
    e("v_lshl_add_u32 v3, v2, 2, s61")
    for i in range(32):
        e(f"buffer_load_dword v{16+i}, v3, s[48:51], 0 offen")
        if i < 31:
            e("v_add_u32 v3, 0x10000, v3")
    e("s_lshl_b32 s62, s60, 5")
    e("s_and_b32 s63, s62, 63")
    e("s_cmp_ge_u32 s60, 2")
    e("v_cndmask_b32 v10, v4, v6, scc" if False else "s_cselect_b64 vcc, -1, 0")
    e("s_nop 1")
    e("v_cndmask_b32 v10, v4, v6, vcc")
    e("v_mov_b32 v11, 0")
    e("s_waitcnt vmcnt(0)")
    for i in range(32):
        e(f"s_add_u32 s64, s63, {i}")
        e("s_nop 0")
        e("v_readlane_b32 s65, v10, s64")
        e("s_nop 1")
        e(f"v_fmac_f32 v11, s65, v{16+i}")
    e("v_lshlrev_b32 v3, 2, v0")
    e("ds_write_b32 v3, v11 offset:16384")
    e("s_waitcnt lgkmcnt(0)")
    e("s_barrier")
    e("v_cmp_gt_u32 vcc, 64, v0")
    e("s_and_saveexec_b64 s[58:59], vcc")
    e("ds_read_b32 v12, v3 offset:16384")
    e("ds_read_b32 v13, v3 offset:16640")
    e("ds_read_b32 v14, v3 offset:16896")
    e("ds_read_b32 v15, v3 offset:17152")
    e("s_waitcnt lgkmcnt(0)")
    e("v_add_f32 v12, v12, v13")
    e("v_add_f32 v14, v14, v15")
    e("v_add_f32 v12, v12, v14")
    e("ds_write_b32 v3, v12")
    e("s_mov_b64 exec, s[58:59]")
    gemv_rows(name)
    epilogue(name)

def k5():
    name = "k5_kernel"
    prologue(name, 256)
    e("s_and_b32 s62, s2, 3")
    e("s_lshr_b32 s61, s2, 2")
    srd(44, 26, 4194304)
    e("s_movk_i32 s52, 1024")
    e("s_lshl_b32 s53, s61, 6")
    e("s_lshl_b32 s54, s62, 8")
    e("s_lshl_b32 s55, s61, 11")
    e("s_lshl_b32 s63, s62, 9")
    e("s_add_u32 s55, s55, s63")
    e(f"s_add_u32 s55, s55, {OPP}")
    e("v_add_u32 v5, s53, v0")
    e("v_lshlrev_b32 v6, 2, v5")
    e(f"v_add_u32 v6, {CP}, v6")
    for p in range(8):
        e(f"buffer_load_dword v{8+p}, v6, s[48:51], 0 offen")
        if p < 7:
            e("v_add_u32 v6, 16384, v6")
    e("s_waitcnt vmcnt(0)")
    for p in range(1, 8):
        e(f"v_add_f32 v8, v8, v{8+p}")
    bf16_round(8, 8)
    e("v_lshlrev_b32 v4, 2, v0")
    e("v_cmp_gt_u32 vcc, 64, v0")
    e("s_and_saveexec_b64 s[58:59], vcc")
    e("ds_write_b32 v4, v8")
    e("s_mov_b64 exec, s[58:59]")
    gemv_rows(name)
    epilogue(name)

def k6():
    name = "k6_kernel"
    prologue(name, 2)
    srd(44, 16, 1024)
    srd(60, 36, 1024)
    srd(64, 38, 1024)
    e("v_and_b32 v2, 63, v0")
    e("v_lshlrev_b32 v3, 4, v2")
    e("buffer_load_dwordx4 v[4:7], v3, s[44:47], 0 offen")
    e("buffer_load_dwordx4 v[8:11], v3, s[60:63], 0 offen")
    e("s_lshl_b32 s3, s2, 8")
    e("v_add_u32 v1, s3, v0")
    e("v_lshlrev_b32 v12, 2, v1")
    e(f"v_add_u32 v13, {OPP}, v12")
    for p in range(64):
        e(f"buffer_load_dword v{32+p}, v13, s[48:51], 0 offen" + (f" offset:{2048*(p%2)}" if p % 2 else ""))
        if p % 2 == 1 and p < 63:
            e("v_add_u32 v13, 4096, v13")
    e("s_waitcnt vmcnt(62)")
    e("v_mov_b32 v14, 0")
    for d in range(4):
        e(f"v_lshlrev_b32 v15, 16, v{4+d}")
        e(f"v_lshlrev_b32 v16, 16, v{8+d}")
        e("v_mul_f32 v15, v15, v16")
        bf16_round(15, 15)
        e("v_add_f32 v14, v14, v15")
        e(f"v_and_b32 v15, 0xffff0000, v{4+d}")
        e(f"v_and_b32 v16, 0xffff0000, v{8+d}")
        e("v_mul_f32 v15, v15, v16")
        bf16_round(15, 15)
        e("v_add_f32 v14, v14, v15")
    e("s_nop 1")
    for r in (8, 4, 2, 1):
        e(f"v_add_f32_dpp v14, v14, v14 row_ror:{r} row_mask:0xf bank_mask:0xf")
        e("s_nop 1")
    e("v_readlane_b32 s4, v14, 0")
    e("v_readlane_b32 s5, v14, 16")
    e("v_readlane_b32 s6, v14, 32")
    e("v_readlane_b32 s7, v14, 48")
    e("s_nop 1")
    e("v_mov_b32 v14, s4")
    e("v_add_f32 v14, s5, v14")
    e("v_add_f32 v14, s6, v14")
    e("v_add_f32 v14, s7, v14")
    bf16_round(14, 14)
    e("v_mul_f32 v14, 0xbfb8aa3b, v14")
    e("v_exp_f32 v14, v14")
    e("s_nop 0")
    e("v_add_f32 v14, 1.0, v14")
    e("v_rcp_f32 v14, v14")
    e("s_nop 0")
    bf16_round(14, 14)
    e("s_waitcnt vmcnt(0)")
    for st in (32, 16, 8, 4, 2, 1):
        for i in range(st):
            e(f"v_add_f32 v{32+i}, v{32+i}, v{32+i+st}")
    bf16_round(32, 32)
    e(f"v_add_u32 v13, {BP}, v12")
    for p in range(22):
        e(f"buffer_load_dword v{40+p}, v13, s[48:51], 0 offen" + (f" offset:{2048*(p%2)}" if p % 2 else ""))
        if p % 2 == 1 and p < 21:
            e("v_add_u32 v13, 4096, v13")
    e("s_waitcnt vmcnt(0)")
    for p in range(1, 22):
        e(f"v_add_f32 v40, v40, v{40+p}")
    bf16_round(40, 40)
    e("v_mul_f32 v32, v14, v32")
    bf16_round(32, 32)
    e("v_sub_f32 v15, 1.0, v14")
    bf16_round(15, 15)
    e("v_mul_f32 v40, v15, v40")
    bf16_round(40, 40)
    e("v_add_f32 v32, v32, v40")
    e("v_cvt_pk_bf16_f32 v32, v32, v32")
    e("v_lshlrev_b32 v12, 1, v1")
    e("buffer_store_short v32, v12, s[64:67], 0 offen")
    epilogue(name)

import struct, math
c1 = (128 ** -0.5) * math.log2(math.e)
C1HEX = "0x%08x" % struct.unpack("<I", struct.pack("<f", c1))[0]

hdr = []
hdr.append(f"; @launch kernel=k1_kernel grid=({432+NPF},1,1) block=(256,1,1) lds=16384")
hdr.append("; @launch kernel=k2_kernel grid=(344,1,1) block=(256,1,1) lds=16384")
hdr.append(f"; @launch kernel=k3_kernel grid=({NSPLIT},1,1) block=(256,1,1) lds={LDS_K3}")
hdr.append("; @launch kernel=k4_kernel grid=(256,1,1) block=(256,1,1) lds=20480")
hdr.append("; @launch kernel=k5_kernel grid=(256,1,1) block=(256,1,1) lds=16384")
hdr.append("; @launch kernel=k6_kernel grid=(2,1,1) block=(256,1,1) lds=0")
hdr.append('.amdgcn_target "amdgcn-amd-amdhsa--gfx950"')
hdr.append(".text")
k1(); k2(); k3(); k4(); k5(); k6()
L.append('.section .rodata,"a"')
for n in ("k1_kernel", "k2_kernel", "k3_kernel", "k4_kernel", "k5_kernel", "k6_kernel"):
    L.append(".p2align 6")
    kd(n)
txt = "\n".join(hdr + L) + "\n"
txt = txt.replace("C1VAL", C1HEX)
open(OUT, "w").write(txt)
print("wrote", OUT, len(txt))
```

```python
import sys

STAMPARG = len(sys.argv) > 2
OUT = sys.argv[1] if len(sys.argv) > 1 else "gated_mix__compressed_kv_cla__swiglu_ffn__decode.s"

QP   = 0x000000
GUP  = 0x040000
QABS = 0x080000
BP   = 0x0A0000
AM   = 0x0C0000
CP   = 0x0E0000
OPP  = 0x120000
AP   = 0x200000
WS_SIZE = 0x1000000
NSPLIT = 128
NPF = 342
KPW = 8192 // NSPLIT

L = []
def e(s): L.append("    " + s)
def lab(s): L.append(s + ":")
def comment(s): L.append("    ; " + s)

def srd(dst, ptr, size):
    e(f"s_mov_b32 s{dst}, s{ptr}")
    e(f"s_mov_b32 s{dst+1}, s{ptr+1}")
    e(f"s_mov_b32 s{dst+2}, {size}")
    e(f"s_mov_b32 s{dst+3}, 0x00020000")

NWG = 256
def prologue(name, nwg):
    e("s_mov_b32 s2, s98")
    lab(name + "_top")
    e(f"s_cmp_ge_u32 s2, {nwg}")
    e(f"s_cbranch_scc1 {name}_done")
    srd(48, 42, WS_SIZE)

phase_id = [0]
def epilogue(name):
    lab(name + "_end")
    e("s_mov_b64 exec, -1")
    e("s_waitcnt vmcnt(0) lgkmcnt(0)")
    e("s_barrier")
    e(f"s_add_u32 s2, s2, {NWG}")
    e(f"s_branch {name}_top")
    lab(name + "_done")
    if name == "k6_kernel":
        return
    p = phase_id[0]; phase_id[0] += 1
    e("s_waitcnt vmcnt(0) lgkmcnt(0)")
    e("s_barrier")
    e("v_cmp_eq_u32 vcc, 0, v0")
    e("s_and_saveexec_b64 s[58:59], vcc")
    e(f"s_cbranch_execz {name}_bw")
    e(f"v_mov_b32 v1, {4*p}")
    e("v_mov_b32 v2, 1")
    e("buffer_atomic_add v2, v1, s[92:95], 0 offen sc1")
    e("s_mov_b32 s96, 0")
    lab(name + "_poll")
    e("buffer_load_dword v3, v1, s[92:95], 0 offen sc1")
    e("s_waitcnt vmcnt(0)")
    e("v_readfirstlane_b32 s97, v3")
    e("s_add_u32 s96, s96, 1")
    e("s_cmp_ge_u32 s96, 0x40000")
    e(f"s_cbranch_scc1 {name}_bw")
    e(f"s_cmp_lt_u32 s97, {NWG}")
    e(f"s_cbranch_scc1 {name}_poll")
    lab(name + "_bw")
    e("s_mov_b64 exec, -1")
    e("s_barrier")

STAMP = STAMPARG
nstamp = [0]
def stamp():
    if not STAMP: return
    i = nstamp[0]; nstamp[0] += 1
    e(f"s_memtime s[{70+2*i}:{71+2*i}]")
    e("s_waitcnt lgkmcnt(0)")
def stamp_flush(name):
    if not STAMP: return
    n = nstamp[0]
    e("s_cmp_lg_u32 s2, 0")
    e(f"s_cbranch_scc1 {name}_end")
    srd(60, 40, 256)
    e("v_cmp_eq_u32 vcc, 0, v0")
    e("s_and_saveexec_b64 s[58:59], vcc")
    e("v_mov_b32 v1, 0")
    for i in range(n):
        e(f"v_mov_b32 v2, s{70+2*i}")
        e(f"buffer_store_dword v2, v1, s[60:63], 0 offen offset:{4*i}")
    nstamp[0] = 0

def bf16_round(vd, vs):
    e(f"v_cvt_pk_bf16_f32 v{vd}, v{vs}, v{vs}")
    e(f"v_lshlrev_b32 v{vd}, 16, v{vd}")

def gemv_rows(name):
    e("v_lshrrev_b32 v1, 4, v0")
    e("v_and_b32 v2, 15, v0")
    e("v_add_u32 v3, s53, v1")
    e("v_mul_lo_u32 v3, v3, s52")
    e("v_lshl_add_u32 v3, v2, 4, v3")
    e("v_add_u32 v3, s54, v3")
    e("s_lshl_b32 s56, s52, 4")
    for p in range(4):
        e(f"buffer_load_dwordx4 v[{8+4*p}:{11+4*p}], v3, s[44:47], 0 offen")
        if p < 3:
            e("v_add_u32 v3, s56, v3")
    e("s_waitcnt lgkmcnt(0)")
    e("s_barrier")
    e("v_lshlrev_b32 v4, 2, v1")
    for p in range(4):
        e(f"ds_read_b32 v{24+p}, v4 offset:{64*p}")
    for j in range(8):
        e(f"v_mov_b32 v{28+j}, 0")
    e("s_waitcnt vmcnt(0) lgkmcnt(0)")
    for p in range(4):
        for d in range(4):
            e(f"v_lshlrev_b32 v36, 16, v{8+4*p+d}")
            e(f"v_and_b32 v37, 0xffff0000, v{8+4*p+d}")
            e(f"v_fmac_f32 v{28+2*d}, v36, v{24+p}")
            e(f"v_fmac_f32 v{29+2*d}, v37, v{24+p}")
    e("v_lshlrev_b32 v4, 9, v1")
    e("v_lshl_add_u32 v4, v2, 5, v4")
    e("ds_write_b128 v4, v[28:31] offset:1024")
    e("ds_write_b128 v4, v[32:35] offset:1040")
    e("s_waitcnt lgkmcnt(0)")
    e("s_barrier")
    e("v_cmp_gt_u32 vcc, 128, v0")
    e("s_and_saveexec_b64 s[58:59], vcc")
    e(f"s_cbranch_execz {name}_end")
    e("v_lshlrev_b32 v4, 2, v0")
    for i in range(16):
        e(f"ds_read_b32 v{8+i}, v4 offset:{1024+512*i}")
    e("s_waitcnt lgkmcnt(0)")
    for st in (8, 4, 2, 1):
        for i in range(st):
            e(f"v_add_f32 v{8+i}, v{8+i}, v{8+i+st}")
    e("v_add_u32 v4, s55, v4")
    e("buffer_store_dword v8, v4, s[48:51], 0 offen sc1")

def kd(name, vgpr=128, sgpr=96):
    L.append(".amdhsa_kernel %s" % name)
    L.append("  .amdhsa_next_free_vgpr %d" % vgpr)
    L.append("  .amdhsa_next_free_sgpr %d" % sgpr)
    L.append("  .amdhsa_accum_offset %d" % ((vgpr + 3) // 4 * 4))
    L.append("  .amdhsa_group_segment_fixed_size 0")
    L.append("  .amdhsa_kernarg_size 112")
    L.append("  .amdhsa_user_sgpr_count 2")
    L.append("  .amdhsa_user_sgpr_kernarg_segment_ptr 1")
    L.append("  .amdhsa_system_sgpr_workgroup_id_x 1")
    L.append(".end_amdhsa_kernel")

def k1():
    name = "k1_kernel"
    prologue(name, 432)
    e("s_cmp_ge_u32 s2, 256")
    e("s_cbranch_scc1 k1_ffn")
    srd(44, 20, 4194304)
    e("s_movk_i32 s52, 8192")
    e("s_lshr_b32 s57, s2, 5")
    e("s_lshl_b32 s53, s57, 6")
    e("s_and_b32 s54, s2, 31")
    e("s_lshl_b32 s54, s54, 8")
    e("s_lshl_b32 s55, s57, 14")
    e("s_add_u32 s55, s55, s54")
    e("s_add_u32 s55, s55, s54")
    e(f"s_add_u32 s55, s55, {QP}")
    e("s_branch k1_go")
    lab("k1_ffn")
    e("s_sub_u32 s57, s2, 256")
    e("s_cmp_ge_u32 s57, 88")
    e("s_cselect_b32 s60, 1, 0")
    e("s_cselect_b32 s44, s32, s30")
    e("s_cselect_b32 s45, s33, s31")
    e("s_mov_b32 s46, 1409024")
    e("s_mov_b32 s47, 0x00020000")
    e("s_mul_i32 s61, s60, 88")
    e("s_sub_u32 s57, s57, s61")
    e("s_mul_i32 s61, s57, 373")
    e("s_lshr_b32 s61, s61, 12")
    e("s_mul_i32 s62, s61, 11")
    e("s_sub_u32 s62, s57, s62")
    e("s_movk_i32 s52, 2752")
    e("s_lshl_b32 s53, s61, 6")
    e("s_lshl_b32 s54, s62, 8")
    e("s_mul_i32 s55, s61, 11264")
    e("s_mul_i32 s63, s60, 5632")
    e("s_add_u32 s55, s55, s63")
    e("s_lshl_b32 s63, s62, 9")
    e("s_add_u32 s55, s55, s63")
    e(f"s_add_u32 s55, s55, {GUP}")
    lab("k1_go")
    srd(60, 16, 1024)
    e("v_add_u32 v5, s53, v0")
    e("v_lshlrev_b32 v5, 1, v5")
    e("buffer_load_ushort v6, v5, s[60:63], 0 offen")
    e("v_lshlrev_b32 v4, 2, v0")
    e("s_waitcnt vmcnt(0)")
    e("v_lshlrev_b32 v6, 16, v6")
    e("v_cmp_gt_u32 vcc, 64, v0")
    e("s_and_saveexec_b64 s[58:59], vcc")
    e("ds_write_b32 v4, v6")
    e("s_mov_b64 exec, s[58:59]")
    gemv_rows(name)
    epilogue(name)

def k2():
    name = "k2_kernel"
    prologue(name, 344)
    e("s_cmp_ge_u32 s2, 256")
    e("s_cbranch_scc1 k2_ffn")
    e("s_lshr_b32 s57, s2, 3")
    e("s_and_b32 s60, s2, 7")
    srd(44, 22, 4194304)
    e("v_lshrrev_b32 v1, 4, v0")
    e("v_and_b32 v2, 15, v0")
    e("s_lshl_b32 s61, s57, 9")
    e(f"s_add_u32 s61, s61, {QP}")
    e("v_lshl_add_u32 v3, v2, 5, s61")
    for p in range(8):
        e(f"v_add_u32 v4, {p*16384}, v3" if p else "v_mov_b32 v4, v3")
        e(f"buffer_load_dwordx4 v[{8+8*p}:{11+8*p}], v4, s[48:51], 0 offen sc1")
        e(f"buffer_load_dwordx4 v[{12+8*p}:{15+8*p}], v4, s[48:51], 0 offen offset:16 sc1")
    e("s_lshl_b32 s62, s60, 6")
    e("v_add_u32 v5, s62, v1")
    e("v_lshlrev_b32 v5, 13, v5")
    e("v_lshl_add_u32 v5, v2, 4, v5")
    e("s_lshl_b32 s63, s57, 8")
    e("v_add_u32 v5, s63, v5")
    for p in range(4):
        e(f"buffer_load_dwordx4 v[{80+4*p}:{83+4*p}], v5, s[44:47], 0 offen")
        if p < 3:
            e("v_add_u32 v5, 0x20000, v5")
    e("s_waitcnt vmcnt(4)")
    for p in range(1, 8):
        for j in range(8):
            e(f"v_add_f32 v{8+j}, v{8+j}, v{8+8*p+j}")
    for j in range(8):
        bf16_round(8 + j, 8 + j)
    e("s_waitcnt vmcnt(0)")
    for p in range(4):
        e(f"v_mov_b32 v{100+p}, 0")
        for d in range(4):
            e(f"v_lshlrev_b32 v36, 16, v{80+4*p+d}")
            e(f"v_and_b32 v37, 0xffff0000, v{80+4*p+d}")
            e(f"v_fmac_f32 v{100+p}, v36, v{8+2*d}")
            e(f"v_fmac_f32 v{100+p}, v37, v{9+2*d}")
    e("s_nop 1")
    for r in (8, 4, 2, 1):
        for p in range(4):
            e(f"v_add_f32_dpp v{100+p}, v{100+p}, v{100+p} row_ror:{r} row_mask:0xf bank_mask:0xf")
        e("s_nop 1")
    for p in range(4):
        e(f"v_cvt_pk_bf16_f32 v{100+p}, v{100+p}, v{100+p}")
    e("s_lshl_b32 s61, s57, 10")
    e(f"s_add_u32 s61, s61, {QABS}")
    e("s_lshl_b32 s62, s60, 7")
    e("s_add_u32 s61, s61, s62")
    e("v_lshl_add_u32 v5, v1, 1, s61")
    e("v_cmp_eq_u32 vcc, 0, v2")
    e("s_and_saveexec_b64 s[58:59], vcc")
    for p in range(4):
        e(f"buffer_store_short v{100+p}, v5, s[48:51], 0 offen offset:{32*p} sc1")
    e("s_branch k2_kernel_end")
    lab("k2_ffn")
    e("s_sub_u32 s57, s2, 256")
    e("s_and_b32 s62, s57, 3")
    e("s_lshr_b32 s61, s57, 2")
    srd(44, 34, 1409024)
    e("s_movk_i32 s52, 1024")
    e("s_lshl_b32 s53, s61, 6")
    e("s_lshl_b32 s54, s62, 8")
    e("s_lshl_b32 s55, s61, 11")
    e("s_lshl_b32 s63, s62, 9")
    e("s_add_u32 s55, s55, s63")
    e(f"s_add_u32 s55, s55, {BP}")
    e("v_add_u32 v5, s53, v0")
    e("v_lshlrev_b32 v6, 2, v5")
    e(f"v_add_u32 v6, {GUP}, v6")
    for p in range(8):
        e(f"buffer_load_dword v{8+p}, v6, s[48:51], 0 offen sc1" + (f" offset:{0}" if False else ""))
        e(f"buffer_load_dword v{16+p}, v6, s[48:51], 0 offen offset:{5632-4096} sc1" if False else f"v_add_u32 v7, 5632, v6")
        e(f"buffer_load_dword v{16+p}, v7, s[48:51], 0 offen sc1")
        if p < 7:
            e("v_add_u32 v6, 11264, v6")
    e("s_waitcnt vmcnt(0)")
    for p in range(1, 8):
        e(f"v_add_f32 v8, v8, v{8+p}")
        e(f"v_add_f32 v16, v16, v{16+p}")
    bf16_round(8, 8)
    bf16_round(16, 16)
    e("v_mul_f32 v9, 0xbfb8aa3b, v8")
    e("v_exp_f32 v9, v9")
    e("s_nop 0")
    e("v_add_f32 v9, 1.0, v9")
    e("v_rcp_f32 v9, v9")
    e("s_nop 0")
    e("v_mul_f32 v9, v8, v9")
    bf16_round(9, 9)
    e("v_mul_f32 v9, v9, v16")
    bf16_round(9, 9)
    e("v_cmp_gt_u32 vcc, 1376, v5")
    e("s_nop 1")
    e("v_cndmask_b32 v9, 0, v9, vcc")
    e("v_lshlrev_b32 v4, 2, v0")
    e("v_cmp_gt_u32 vcc, 64, v0")
    e("s_and_saveexec_b64 s[58:59], vcc")
    e("ds_write_b32 v4, v9")
    e("s_mov_b64 exec, s[58:59]")
    gemv_rows(name)
    epilogue(name)

CSTR = 1040
PSTR = KPW * 2 + 16
LDS_ST = 0
LDS_P = 2048
LDS_Q = 8192
LDS_C = LDS_Q + 32 * CSTR
LDS_K3 = LDS_C + KPW * CSTR

def k3():
    name = "k3_kernel"
    prologue(name, NSPLIT)
    srd(44, 18, 8388608)
    stamp()
    e("v_lshrrev_b32 v1, 6, v0")
    e("v_and_b32 v2, 63, v0")
    e("s_nop 0")
    e("v_readfirstlane_b32 s60, v1")
    e(f"s_mul_i32 s61, s2, {KPW*1024}")
    e("s_lshl_b32 s62, s60, 14")
    e("s_add_u32 s61, s61, s62")
    e("v_lshlrev_b32 v3, 4, v2")
    e(f"s_mul_i32 s63, s60, {16*CSTR}")
    e(f"s_add_u32 s63, s63, {LDS_C}")
    for r in range(16):
        e(f"s_add_u32 s64, s63, {r*CSTR}")
        e("s_mov_b32 m0, s64")
        e(f"s_add_u32 s65, s61, {r*1024}")
        e("buffer_load_dwordx4 v3, s[44:47], s65 offen lds")
    e(f"s_mul_i32 s63, s60, {8*CSTR}")
    e(f"s_add_u32 s63, s63, {LDS_Q}")
    e("s_lshl_b32 s61, s60, 13")
    e(f"s_add_u32 s61, s61, {QABS}")
    for r in range(8):
        e(f"s_add_u32 s64, s63, {r*CSTR}")
        e("s_mov_b32 m0, s64")
        e(f"s_add_u32 s65, s61, {r*1024}")
        e("buffer_load_dwordx4 v3, s[48:51], s65 offen sc1 lds")
    e("v_and_b32 v4, 15, v2")
    e("v_lshrrev_b32 v5, 4, v2")
    e("v_lshlrev_b32 v6, 4, v1")
    e("v_add_u32 v6, v6, v4")
    e(f"v_mul_u32_u24 v6, {CSTR}, v6")
    e("v_lshl_add_u32 v6, v5, 4, v6")
    e(f"v_add_u32 v6, {LDS_C}, v6")
    e(f"v_mul_u32_u24 v7, {CSTR}, v4")
    e("v_lshl_add_u32 v7, v5, 4, v7")
    e(f"v_add_u32 v7, {LDS_Q}, v7")
    for i in range(8):
        e(f"v_mov_b32 v{16+i}, 0")
    e("s_waitcnt vmcnt(0)")
    e("s_barrier")
    stamp()
    for t in range(16):
        e(f"ds_read_b128 v[{32+4*(t%2)*3}:{35+4*(t%2)*3}], v6 offset:{64*t}")
        e(f"ds_read_b128 v[{36+4*(t%2)*3}:{39+4*(t%2)*3}], v7 offset:{64*t}")
        e(f"ds_read_b128 v[{40+4*(t%2)*3}:{43+4*(t%2)*3}], v7 offset:{64*t+16*CSTR}")
        e("s_waitcnt lgkmcnt(0)")
        b = 32 + 12 * (t % 2)
        e(f"v_mfma_f32_16x16x32_bf16 v[16:19], v[{b}:{b+3}], v[{b+4}:{b+7}], v[16:19]")
        e(f"v_mfma_f32_16x16x32_bf16 v[20:23], v[{b}:{b+3}], v[{b+8}:{b+11}], v[20:23]")
    e("s_nop 15")
    stamp()
    e("v_max_f32 v24, v16, v17")
    e("v_max3_f32 v24, v24, v18, v19")
    e("v_max_f32 v25, v20, v21")
    e("v_max3_f32 v25, v25, v22, v23")
    e("v_xor_b32 v26, 16, v2")
    e("v_lshlrev_b32 v26, 2, v26")
    e("ds_bpermute_b32 v27, v26, v24")
    e("ds_bpermute_b32 v28, v26, v25")
    e("s_waitcnt lgkmcnt(0)")
    e("v_max_f32 v24, v24, v27")
    e("v_max_f32 v25, v25, v28")
    e("v_xor_b32 v26, 32, v2")
    e("v_lshlrev_b32 v26, 2, v26")
    e("ds_bpermute_b32 v27, v26, v24")
    e("ds_bpermute_b32 v28, v26, v25")
    e("s_waitcnt lgkmcnt(0)")
    e("v_max_f32 v24, v24, v27")
    e("v_max_f32 v25, v25, v28")
    e("v_lshlrev_b32 v26, 7, v1")
    e("v_lshl_add_u32 v26, v4, 2, v26")
    e(f"ds_write_b32 v26, v24 offset:{LDS_ST}")
    e(f"ds_write_b32 v26, v25 offset:{LDS_ST+64}")
    e("s_waitcnt lgkmcnt(0)")
    e("s_barrier")
    e("v_lshlrev_b32 v26, 2, v4")
    for w in range(4):
        e(f"ds_read_b32 v{40+w}, v26 offset:{LDS_ST+128*w}")
        e(f"ds_read_b32 v{44+w}, v26 offset:{LDS_ST+128*w+64}")
    e("s_waitcnt lgkmcnt(0)")
    e("v_max_f32 v24, v40, v41")
    e("v_max3_f32 v24, v24, v42, v43")
    e("v_max_f32 v25, v44, v45")
    e("v_max3_f32 v25, v25, v46, v47")
    C1 = 0x3e0293ee
    e("s_mov_b32 s66, C1VAL")
    for i in range(4):
        e(f"v_sub_f32 v{16+i}, v{16+i}, v24")
        e(f"v_sub_f32 v{20+i}, v{20+i}, v25")
    for i in range(8):
        e(f"v_mul_f32 v{16+i}, s66, v{16+i}")
    for i in range(8):
        e(f"v_exp_f32 v{16+i}, v{16+i}")
    e("s_nop 1")
    e("v_add_f32 v27, v16, v17")
    e("v_add_f32 v28, v18, v19")
    e("v_add_f32 v27, v27, v28")
    e("v_add_f32 v28, v20, v21")
    e("v_add_f32 v29, v22, v23")
    e("v_add_f32 v28, v28, v29")
    e("v_cvt_pk_bf16_f32 v32, v16, v17")
    e("v_cvt_pk_bf16_f32 v33, v18, v19")
    e("v_cvt_pk_bf16_f32 v34, v20, v21")
    e("v_cvt_pk_bf16_f32 v35, v22, v23")
    e(f"v_mul_u32_u24 v36, {PSTR}, v4")
    e("v_lshlrev_b32 v37, 5, v1")
    e("v_add_u32 v36, v36, v37")
    e("v_lshl_add_u32 v36, v5, 3, v36")
    e(f"ds_write_b64 v36, v[32:33] offset:{LDS_P}")
    e(f"ds_write_b64 v36, v[34:35] offset:{LDS_P+16*PSTR}")
    e("v_xor_b32 v26, 16, v2")
    e("v_lshlrev_b32 v26, 2, v26")
    e("ds_bpermute_b32 v29, v26, v27")
    e("ds_bpermute_b32 v30, v26, v28")
    e("s_waitcnt lgkmcnt(0)")
    e("v_add_f32 v27, v27, v29")
    e("v_add_f32 v28, v28, v30")
    e("v_xor_b32 v26, 32, v2")
    e("v_lshlrev_b32 v26, 2, v26")
    e("ds_bpermute_b32 v29, v26, v27")
    e("ds_bpermute_b32 v30, v26, v28")
    e("s_waitcnt lgkmcnt(0)")
    e("v_add_f32 v27, v27, v29")
    e("v_add_f32 v28, v28, v30")
    e("v_lshlrev_b32 v26, 7, v1")
    e("v_lshl_add_u32 v26, v4, 2, v26")
    e(f"ds_write_b32 v26, v27 offset:{LDS_ST+512}")
    e(f"ds_write_b32 v26, v28 offset:{LDS_ST+512+64}")
    e("s_waitcnt lgkmcnt(0)")
    e("s_barrier")
    e("v_lshlrev_b32 v26, 2, v4")
    for w in range(4):
        e(f"ds_read_b32 v{40+w}, v26 offset:{LDS_ST+512+128*w}")
        e(f"ds_read_b32 v{44+w}, v26 offset:{LDS_ST+512+128*w+64}")
    e("s_waitcnt lgkmcnt(0)")
    e("v_add_f32 v40, v40, v41")
    e("v_add_f32 v42, v42, v43")
    e("v_add_f32 v40, v40, v42")
    e("v_add_f32 v44, v44, v45")
    e("v_add_f32 v46, v46, v47")
    e("v_add_f32 v44, v44, v46")
    e("s_lshl_b32 s61, s2, 8")
    e(f"s_add_u32 s61, s61, {AM}")
    e("v_lshl_add_u32 v26, v4, 3, s61")
    e("v_cmp_gt_u32 vcc, 16, v0")
    e("s_and_saveexec_b64 s[58:59], vcc")
    e("v_mov_b32 v41, v40")
    e("v_mov_b32 v40, v24")
    e("v_mov_b32 v45, v44")
    e("v_mov_b32 v44, v25")
    e("buffer_store_dwordx2 v[40:41], v26, s[48:51], 0 offen sc1")
    e("buffer_store_dwordx2 v[44:45], v26, s[48:51], 0 offen offset:128 sc1")
    e("s_mov_b64 exec, s[58:59]")
    stamp()
    e("v_and_b32 v4, 31, v2")
    e("v_lshrrev_b32 v5, 5, v2")
    e(f"v_mul_u32_u24 v6, {PSTR}, v4")
    e("v_lshl_add_u32 v6, v5, 4, v6")
    e(f"v_add_u32 v6, {LDS_P}, v6")
    e("v_and_b32 v7, 15, v2")
    e("v_lshrrev_b32 v8, 2, v7")
    e("v_lshl_add_u32 v8, v5, 3, v8")
    e(f"v_mul_u32_u24 v8, {CSTR}, v8")
    e("v_and_b32 v9, 3, v7")
    e("v_lshlrev_b32 v9, 3, v9")
    e("v_bfe_u32 v10, v2, 4, 1")
    e("v_lshl_add_u32 v9, v10, 5, v9")
    e("v_add_u32 v8, v8, v9")
    e("v_lshl_add_u32 v8, v1, 8, v8")
    e(f"v_add_u32 v8, {LDS_C}, v8")
    for i in range(64):
        e(f"v_mov_b32 v{64+i}, 0")
    for j in range(KPW // 16):
        e(f"ds_read_b128 v[12:15], v6 offset:{32*j}")
        for n in range(4):
            e(f"ds_read_b64_tr_b16 v[{16+4*n}:{17+4*n}], v8 offset:{16*j*CSTR + 64*n}")
            e(f"ds_read_b64_tr_b16 v[{18+4*n}:{19+4*n}], v8 offset:{(16*j+4)*CSTR + 64*n}")
        e("s_waitcnt lgkmcnt(0)")
        for n in range(4):
            e(f"v_mfma_f32_32x32x16_bf16 v[{64+16*n}:{79+16*n}], v[12:15], v[{16+4*n}:{19+4*n}], v[{64+16*n}:{79+16*n}]")
    e("s_nop 15")
    e("s_nop 3")
    stamp()
    e("s_lshl_b32 s61, s2, 16")
    e(f"s_add_u32 s61, s61, {AP}")
    e("v_lshlrev_b32 v9, 13, v5")
    e("v_lshl_add_u32 v9, v4, 2, v9")
    e("v_lshl_add_u32 v9, v1, 9, v9")
    e("v_add_u32 v9, s61, v9")
    for n in range(4):
        for i in range(16):
            h = 8 * (i // 4) + (i % 4)
            off = h * 2048 + n * 128
            if off < 4096:
                e(f"buffer_store_dword v{64+16*n+i}, v9, s[48:51], 0 offen offset:{off} sc1")
            else:
                e(f"v_add_u32 v10, {off}, v9")
                e(f"buffer_store_dword v{64+16*n+i}, v10, s[48:51], 0 offen sc1")
    e("s_waitcnt vmcnt(0)")
    stamp()
    stamp_flush(name)
    epilogue(name)

def k4():
    name = "k4_kernel"
    prologue(name, 256)
    e("s_lshr_b32 s57, s2, 3")
    e("s_and_b32 s60, s2, 7")
    srd(44, 24, 4194304)
    e("s_movk_i32 s52, 8192")
    e("s_lshl_b32 s53, s60, 6")
    e("s_lshl_b32 s54, s57, 8")
    e("s_lshl_b32 s55, s60, 14")
    e("s_lshl_b32 s61, s57, 9")
    e("s_add_u32 s55, s55, s61")
    e(f"s_add_u32 s55, s55, {CP}")
    e("v_lshrrev_b32 v1, 6, v0")
    e("v_and_b32 v2, 63, v0")
    e("s_lshl_b32 s61, s57, 3")
    e(f"s_add_u32 s61, s61, {AM}")
    e("v_lshl_add_u32 v3, v2, 8, s61")
    e("buffer_load_dwordx2 v[4:5], v3, s[48:51], 0 offen sc1")
    e("v_add_u32 v3, 16384, v3")
    e("buffer_load_dwordx2 v[6:7], v3, s[48:51], 0 offen sc1")
    e("s_waitcnt vmcnt(0)")
    e("v_max_f32 v8, v4, v6")
    e("s_nop 1")
    for r in (8, 4, 2, 1):
        e(f"v_max_f32_dpp v8, v8, v8 row_ror:{r} row_mask:0xf bank_mask:0xf")
        e("s_nop 1")
    e("v_readlane_b32 s61, v8, 0")
    e("v_readlane_b32 s62, v8, 16")
    e("v_readlane_b32 s63, v8, 32")
    e("v_readlane_b32 s64, v8, 48")
    e("s_nop 1")
    e("v_mov_b32 v8, s61")
    e("v_max_f32 v8, s62, v8")
    e("v_max_f32 v8, s63, v8")
    e("v_max_f32 v8, s64, v8")
    e("s_mov_b32 s66, C1VAL")
    e("v_sub_f32 v4, v4, v8")
    e("v_sub_f32 v6, v6, v8")
    e("v_mul_f32 v4, s66, v4")
    e("v_mul_f32 v6, s66, v6")
    e("v_exp_f32 v4, v4")
    e("v_exp_f32 v6, v6")
    e("s_nop 1")
    e("v_mul_f32 v9, v4, v5")
    e("v_fmac_f32 v9, v6, v7")
    e("s_nop 1")
    for r in (8, 4, 2, 1):
        e(f"v_add_f32_dpp v9, v9, v9 row_ror:{r} row_mask:0xf bank_mask:0xf")
        e("s_nop 1")
    e("v_readlane_b32 s61, v9, 0")
    e("v_readlane_b32 s62, v9, 16")
    e("v_readlane_b32 s63, v9, 32")
    e("v_readlane_b32 s64, v9, 48")
    e("s_nop 1")
    e("v_mov_b32 v9, s61")
    e("v_add_f32 v9, s62, v9")
    e("v_add_f32 v9, s63, v9")
    e("v_add_f32 v9, s64, v9")
    e("v_rcp_f32 v9, v9")
    e("s_nop 1")
    e("v_mul_f32 v4, v4, v9")
    e("v_mul_f32 v6, v6, v9")
    e("v_readfirstlane_b32 s60, v1")
    e("s_and_b32 s61, s2, 7")
    e("s_lshl_b32 s61, s61, 8")
    e("s_lshl_b32 s62, s57, 11")
    e("s_add_u32 s61, s61, s62")
    e(f"s_add_u32 s61, s61, {AP}")
    e("s_lshl_b32 s62, s60, 21")
    e("s_add_u32 s61, s61, s62")
    e("v_lshl_add_u32 v3, v2, 2, s61")
    for i in range(32):
        e(f"buffer_load_dword v{16+i}, v3, s[48:51], 0 offen sc1")
        if i < 31:
            e("v_add_u32 v3, 0x10000, v3")
    e("s_lshl_b32 s62, s60, 5")
    e("s_and_b32 s63, s62, 63")
    e("s_cmp_ge_u32 s60, 2")
    e("v_cndmask_b32 v10, v4, v6, scc" if False else "s_cselect_b64 vcc, -1, 0")
    e("s_nop 1")
    e("v_cndmask_b32 v10, v4, v6, vcc")
    e("v_mov_b32 v11, 0")
    e("s_waitcnt vmcnt(0)")
    for i in range(32):
        e(f"s_add_u32 s64, s63, {i}")
        e("s_nop 0")
        e("v_readlane_b32 s65, v10, s64")
        e("s_nop 1")
        e(f"v_fmac_f32 v11, s65, v{16+i}")
    e("v_lshlrev_b32 v3, 2, v0")
    e("ds_write_b32 v3, v11 offset:16384")
    e("s_waitcnt lgkmcnt(0)")
    e("s_barrier")
    e("v_cmp_gt_u32 vcc, 64, v0")
    e("s_and_saveexec_b64 s[58:59], vcc")
    e("ds_read_b32 v12, v3 offset:16384")
    e("ds_read_b32 v13, v3 offset:16640")
    e("ds_read_b32 v14, v3 offset:16896")
    e("ds_read_b32 v15, v3 offset:17152")
    e("s_waitcnt lgkmcnt(0)")
    e("v_add_f32 v12, v12, v13")
    e("v_add_f32 v14, v14, v15")
    e("v_add_f32 v12, v12, v14")
    e("ds_write_b32 v3, v12")
    e("s_mov_b64 exec, s[58:59]")
    gemv_rows(name)
    epilogue(name)

def k5():
    name = "k5_kernel"
    prologue(name, 256)
    e("s_and_b32 s62, s2, 3")
    e("s_lshr_b32 s61, s2, 2")
    srd(44, 26, 4194304)
    e("s_movk_i32 s52, 1024")
    e("s_lshl_b32 s53, s61, 6")
    e("s_lshl_b32 s54, s62, 8")
    e("s_lshl_b32 s55, s61, 11")
    e("s_lshl_b32 s63, s62, 9")
    e("s_add_u32 s55, s55, s63")
    e(f"s_add_u32 s55, s55, {OPP}")
    e("v_add_u32 v5, s53, v0")
    e("v_lshlrev_b32 v6, 2, v5")
    e(f"v_add_u32 v6, {CP}, v6")
    for p in range(8):
        e(f"buffer_load_dword v{8+p}, v6, s[48:51], 0 offen sc1")
        if p < 7:
            e("v_add_u32 v6, 16384, v6")
    e("s_waitcnt vmcnt(0)")
    for p in range(1, 8):
        e(f"v_add_f32 v8, v8, v{8+p}")
    bf16_round(8, 8)
    e("v_lshlrev_b32 v4, 2, v0")
    e("v_cmp_gt_u32 vcc, 64, v0")
    e("s_and_saveexec_b64 s[58:59], vcc")
    e("ds_write_b32 v4, v8")
    e("s_mov_b64 exec, s[58:59]")
    gemv_rows(name)
    epilogue(name)

def k6():
    name = "k6_kernel"
    prologue(name, 2)
    srd(44, 16, 1024)
    srd(60, 36, 1024)
    srd(64, 38, 1024)
    e("v_and_b32 v2, 63, v0")
    e("v_lshlrev_b32 v3, 4, v2")
    e("buffer_load_dwordx4 v[4:7], v3, s[44:47], 0 offen")
    e("buffer_load_dwordx4 v[8:11], v3, s[60:63], 0 offen")
    e("s_lshl_b32 s3, s2, 8")
    e("v_add_u32 v1, s3, v0")
    e("v_lshlrev_b32 v12, 2, v1")
    e(f"v_add_u32 v13, {OPP}, v12")
    for p in range(64):
        e(f"buffer_load_dword v{32+p}, v13, s[48:51], 0 offen sc1" + (f" offset:{2048*(p%2)}" if p % 2 else ""))
        if p % 2 == 1 and p < 63:
            e("v_add_u32 v13, 4096, v13")
    e("s_waitcnt vmcnt(62)")
    e("v_mov_b32 v14, 0")
    for d in range(4):
        e(f"v_lshlrev_b32 v15, 16, v{4+d}")
        e(f"v_lshlrev_b32 v16, 16, v{8+d}")
        e("v_mul_f32 v15, v15, v16")
        bf16_round(15, 15)
        e("v_add_f32 v14, v14, v15")
        e(f"v_and_b32 v15, 0xffff0000, v{4+d}")
        e(f"v_and_b32 v16, 0xffff0000, v{8+d}")
        e("v_mul_f32 v15, v15, v16")
        bf16_round(15, 15)
        e("v_add_f32 v14, v14, v15")
    e("s_nop 1")
    for r in (8, 4, 2, 1):
        e(f"v_add_f32_dpp v14, v14, v14 row_ror:{r} row_mask:0xf bank_mask:0xf")
        e("s_nop 1")
    e("v_readlane_b32 s4, v14, 0")
    e("v_readlane_b32 s5, v14, 16")
    e("v_readlane_b32 s6, v14, 32")
    e("v_readlane_b32 s7, v14, 48")
    e("s_nop 1")
    e("v_mov_b32 v14, s4")
    e("v_add_f32 v14, s5, v14")
    e("v_add_f32 v14, s6, v14")
    e("v_add_f32 v14, s7, v14")
    bf16_round(14, 14)
    e("v_mul_f32 v14, 0xbfb8aa3b, v14")
    e("v_exp_f32 v14, v14")
    e("s_nop 0")
    e("v_add_f32 v14, 1.0, v14")
    e("v_rcp_f32 v14, v14")
    e("s_nop 0")
    bf16_round(14, 14)
    e("s_waitcnt vmcnt(0)")
    for st in (32, 16, 8, 4, 2, 1):
        for i in range(st):
            e(f"v_add_f32 v{32+i}, v{32+i}, v{32+i+st}")
    bf16_round(32, 32)
    e(f"v_add_u32 v13, {BP}, v12")
    for p in range(22):
        e(f"buffer_load_dword v{40+p}, v13, s[48:51], 0 offen sc1" + (f" offset:{2048*(p%2)}" if p % 2 else ""))
        if p % 2 == 1 and p < 21:
            e("v_add_u32 v13, 4096, v13")
    e("s_waitcnt vmcnt(0)")
    for p in range(1, 22):
        e(f"v_add_f32 v40, v40, v{40+p}")
    bf16_round(40, 40)
    e("v_mul_f32 v32, v14, v32")
    bf16_round(32, 32)
    e("v_sub_f32 v15, 1.0, v14")
    bf16_round(15, 15)
    e("v_mul_f32 v40, v15, v40")
    bf16_round(40, 40)
    e("v_add_f32 v32, v32, v40")
    e("v_cvt_pk_bf16_f32 v32, v32, v32")
    e("v_lshlrev_b32 v12, 1, v1")
    e("buffer_store_short v32, v12, s[64:67], 0 offen")
    epilogue(name)

import struct, math
c1 = (128 ** -0.5) * math.log2(math.e)
C1HEX = "0x%08x" % struct.unpack("<I", struct.pack("<f", c1))[0]

hdr = []
hdr.append(f"; @launch grid=(256,1,1) block=(256,1,1) lds={LDS_K3}")
hdr.append('.amdgcn_target "amdgcn-amd-amdhsa--gfx950"')
hdr.append(".text")
MAIN = "gated_mix__compressed_kv_cla__swiglu_ffn__decode_kernel"
L.append(".globl %s" % MAIN)
L.append(".p2align 8")
L.append(".type %s,@function" % MAIN)
lab(MAIN)
e(f"s_cmp_ge_u32 s2, {NWG}")
e("s_cbranch_scc1 main_end")
e("s_mov_b32 s98, s2")
e("s_load_dwordx16 s[16:31], s[0:1], 0")
e("s_load_dwordx8 s[32:39], s[0:1], 64")
e("s_load_dwordx4 s[40:43], s[0:1], 96")
e("s_waitcnt lgkmcnt(0)")
srd(48, 42, WS_SIZE)
srd(92, 40, 256)
k1(); k2(); k3(); k4(); k5(); k6()
lab("main_end")
e("s_endpgm")
L.append('.section .rodata,"a"')
L.append(".p2align 6")
kd(MAIN, 128, 102)
txt = "\n".join(hdr + L) + "\n"
txt = txt.replace("C1VAL", C1HEX)
import re
txt = re.sub(r"sc1 offset:(\d+)", r"offset:\1 sc1", txt)
open(OUT, "w").write(txt)
print("wrote", OUT, len(txt))
```

```python
import sys

STAMPARG = len(sys.argv) > 2
OUT = sys.argv[1] if len(sys.argv) > 1 else "gated_mix__compressed_kv_cla__swiglu_ffn__decode.s"

QP   = 0x000000
GUP  = 0x040000
QABS = 0x080000
BP   = 0x0A0000
AM   = 0x0C0000
CP   = 0x0E0000
OPP  = 0x120000
AP   = 0x200000
WS_SIZE = 0x1000000
NSPLIT = 128
NPF = 342
KPW = 8192 // NSPLIT

L = []
def e(s): L.append("    " + s)
def lab(s): L.append(s + ":")
def comment(s): L.append("    ; " + s)

def srd(dst, ptr, size):
    e(f"s_mov_b32 s{dst}, s{ptr}")
    e(f"s_mov_b32 s{dst+1}, s{ptr+1}")
    e(f"s_mov_b32 s{dst+2}, {size}")
    e(f"s_mov_b32 s{dst+3}, 0x00020000")

def prologue(name, nwg):
    L.append(".globl %s" % name)
    L.append(".p2align 8")
    L.append(".type %s,@function" % name)
    lab(name)
    e(f"s_cmp_ge_u32 s2, {nwg}")
    e(f"s_cbranch_scc1 {name}_end")
    e("s_load_dwordx16 s[16:31], s[0:1], 0")
    e("s_load_dwordx8 s[32:39], s[0:1], 64")
    e("s_load_dwordx4 s[40:43], s[0:1], 96")
    e("s_waitcnt lgkmcnt(0)")
    srd(48, 42, WS_SIZE)

def epilogue(name):
    lab(name + "_end")
    e("s_endpgm")

STAMP = STAMPARG
nstamp = [0]
def stamp():
    if not STAMP: return
    i = nstamp[0]; nstamp[0] += 1
    e(f"s_memtime s[{70+2*i}:{71+2*i}]")
    e("s_waitcnt lgkmcnt(0)")
def stamp_flush(name):
    if not STAMP: return
    n = nstamp[0]
    e("s_cmp_lg_u32 s2, 0")
    e(f"s_cbranch_scc1 {name}_end")
    srd(60, 40, 256)
    e("v_cmp_eq_u32 vcc, 0, v0")
    e("s_and_saveexec_b64 s[58:59], vcc")
    e("v_mov_b32 v1, 0")
    for i in range(n):
        e(f"v_mov_b32 v2, s{70+2*i}")
        e(f"buffer_store_dword v2, v1, s[60:63], 0 offen offset:{4*i}")
    nstamp[0] = 0

def bf16_round(vd, vs):
    e(f"v_cvt_pk_bf16_f32 v{vd}, v{vs}, v{vs}")
    e(f"v_lshlrev_b32 v{vd}, 16, v{vd}")

def gemv_issue():
    e("v_lshrrev_b32 v1, 4, v0")
    e("v_and_b32 v2, 15, v0")
    e("v_add_u32 v3, s53, v1")
    e("v_mul_lo_u32 v3, v3, s52")
    e("v_lshl_add_u32 v3, v2, 4, v3")
    e("v_add_u32 v3, s54, v3")
    e("s_lshl_b32 s56, s52, 4")
    for p in range(4):
        e(f"buffer_load_dwordx4 v[{108+4*p}:{111+4*p}], v3, s[44:47], 0 offen")
        if p < 3:
            e("v_add_u32 v3, s56, v3")

def gemv_finish(name):
    e("s_waitcnt lgkmcnt(0)")
    e("s_barrier")
    e("v_lshrrev_b32 v1, 4, v0")
    e("v_and_b32 v2, 15, v0")
    e("v_lshlrev_b32 v4, 2, v1")
    for p in range(4):
        e(f"ds_read_b32 v{24+p}, v4 offset:{64*p}")
    for j in range(8):
        e(f"v_mov_b32 v{28+j}, 0")
    e("s_waitcnt vmcnt(0) lgkmcnt(0)")
    for p in range(4):
        for d in range(4):
            e(f"v_lshlrev_b32 v36, 16, v{108+4*p+d}")
            e(f"v_and_b32 v37, 0xffff0000, v{108+4*p+d}")
            e(f"v_fmac_f32 v{28+2*d}, v36, v{24+p}")
            e(f"v_fmac_f32 v{29+2*d}, v37, v{24+p}")
    e("v_lshlrev_b32 v4, 9, v1")
    e("v_lshl_add_u32 v4, v2, 5, v4")
    e("ds_write_b128 v4, v[28:31] offset:1024")
    e("ds_write_b128 v4, v[32:35] offset:1040")
    e("s_waitcnt lgkmcnt(0)")
    e("s_barrier")
    e("v_cmp_gt_u32 vcc, 128, v0")
    e("s_and_saveexec_b64 s[58:59], vcc")
    e(f"s_cbranch_execz {name}_end")
    e("v_lshlrev_b32 v4, 2, v0")
    for i in range(16):
        e(f"ds_read_b32 v{8+i}, v4 offset:{1024+512*i}")
    e("s_waitcnt lgkmcnt(0)")
    for st in (8, 4, 2, 1):
        for i in range(st):
            e(f"v_add_f32 v{8+i}, v{8+i}, v{8+i+st}")
    e("v_add_u32 v4, s55, v4")
    e("buffer_store_dword v8, v4, s[48:51], 0 offen")

def kd(name, vgpr=256, sgpr=96):
    L.append(".amdhsa_kernel %s" % name)
    L.append("  .amdhsa_next_free_vgpr %d" % vgpr)
    L.append("  .amdhsa_next_free_sgpr %d" % sgpr)
    L.append("  .amdhsa_accum_offset %d" % ((vgpr + 3) // 4 * 4))
    L.append("  .amdhsa_group_segment_fixed_size 0")
    L.append("  .amdhsa_kernarg_size 112")
    L.append("  .amdhsa_user_sgpr_count 2")
    L.append("  .amdhsa_user_sgpr_kernarg_segment_ptr 1")
    L.append("  .amdhsa_system_sgpr_workgroup_id_x 1")
    L.append(".end_amdhsa_kernel")

def ka():
    name = "ka_kernel"
    prologue(name, 432)
    e("s_cmp_ge_u32 s2, 256")
    e("s_cbranch_scc1 ka_ffn")
    e("s_and_b32 s57, s2, 31")
    e("s_lshr_b32 s60, s2, 5")
    srd(44, 22, 4194304)
    srd(64, 20, 4194304)
    srd(68, 16, 1024)
    e("v_lshrrev_b32 v1, 4, v0")
    e("v_and_b32 v2, 15, v0")
    e("v_lshlrev_b32 v5, 4, v0")
    e("buffer_load_dwordx4 v[8:11], v5, s[68:71], 0 offen")
    e("s_lshl_b32 s63, s57, 8")
    e("v_lshlrev_b32 v5, 13, v1")
    e("v_lshl_add_u32 v5, v2, 4, v5")
    e("v_add_u32 v5, s63, v5")
    for i in range(32):
        e(f"buffer_load_dwordx4 v[{128+4*i}:{131+4*i}], v5, s[64:67], 0 offen")
        if i < 31:
            e("v_add_u32 v5, 0x20000, v5")
    e("s_lshl_b32 s62, s60, 6")
    e("v_add_u32 v5, s62, v1")
    e("v_lshlrev_b32 v5, 13, v5")
    e("v_lshl_add_u32 v5, v2, 4, v5")
    e("v_add_u32 v5, s63, v5")
    for p in range(4):
        e(f"buffer_load_dwordx4 v[{80+4*p}:{83+4*p}], v5, s[44:47], 0 offen")
        if p < 3:
            e("v_add_u32 v5, 0x20000, v5")
    e("s_waitcnt vmcnt(36)")
    for d in range(4):
        e(f"v_lshlrev_b32 v{12+2*d}, 16, v{8+d}")
        e(f"v_and_b32 v{13+2*d}, 0xffff0000, v{8+d}")
    e("v_lshlrev_b32 v4, 5, v0")
    e("v_cmp_gt_u32 vcc, 64, v0")
    e("s_and_saveexec_b64 s[58:59], vcc")
    e("ds_write_b128 v4, v[12:15] offset:12288")
    e("ds_write_b128 v4, v[16:19] offset:12304")
    e("s_mov_b64 exec, s[58:59]")
    e("s_waitcnt lgkmcnt(0)")
    e("s_barrier")
    e("v_lshlrev_b32 v4, 2, v1")
    for i in range(32):
        e(f"ds_read_b32 v{44+i}, v4 offset:{12288+64*i}")
    for j in range(8):
        e(f"v_mov_b32 v{28+j}, 0")
    for i in range(32):
        e(f"s_waitcnt vmcnt({35-i}) lgkmcnt(0)" if i == 0 else f"s_waitcnt vmcnt({35-i})")
        for d in range(4):
            e(f"v_lshlrev_b32 v36, 16, v{128+4*i+d}")
            e(f"v_and_b32 v37, 0xffff0000, v{128+4*i+d}")
            e(f"v_fmac_f32 v{28+2*d}, v36, v{44+i}")
            e(f"v_fmac_f32 v{29+2*d}, v37, v{44+i}")
    e("v_lshlrev_b32 v4, 9, v1")
    e("v_lshl_add_u32 v4, v2, 5, v4")
    e("ds_write_b128 v4, v[28:31] offset:1024")
    e("ds_write_b128 v4, v[32:35] offset:1040")
    e("s_waitcnt lgkmcnt(0)")
    e("s_barrier")
    e("v_and_b32 v4, 127, v0")
    e("v_lshlrev_b32 v4, 2, v4")
    for i in range(16):
        e(f"ds_read_b32 v{8+i}, v4 offset:{1024+512*i}")
    e("s_waitcnt lgkmcnt(0)")
    for st in (8, 4, 2, 1):
        for i in range(st):
            e(f"v_add_f32 v{8+i}, v{8+i}, v{8+i+st}")
    bf16_round(8, 8)
    e("ds_write_b32 v4, v8")
    e("s_waitcnt lgkmcnt(0)")
    e("s_barrier")
    e("v_lshlrev_b32 v4, 5, v2")
    e("ds_read_b128 v[8:11], v4")
    e("ds_read_b128 v[12:15], v4 offset:16")
    e("s_waitcnt vmcnt(0) lgkmcnt(0)")
    for p in range(4):
        e(f"v_mov_b32 v{100+p}, 0")
        for d in range(4):
            e(f"v_lshlrev_b32 v36, 16, v{80+4*p+d}")
            e(f"v_and_b32 v37, 0xffff0000, v{80+4*p+d}")
            e(f"v_fmac_f32 v{100+p}, v36, v{8+2*d}")
            e(f"v_fmac_f32 v{100+p}, v37, v{9+2*d}")
    e("s_nop 1")
    for r in (8, 4, 2, 1):
        for p in range(4):
            e(f"v_add_f32_dpp v{100+p}, v{100+p}, v{100+p} row_ror:{r} row_mask:0xf bank_mask:0xf")
        e("s_nop 1")
    for p in range(4):
        e(f"v_cvt_pk_bf16_f32 v{100+p}, v{100+p}, v{100+p}")
    e("s_lshl_b32 s61, s57, 10")
    e(f"s_add_u32 s61, s61, {QABS}")
    e("s_lshl_b32 s62, s60, 7")
    e("s_add_u32 s61, s61, s62")
    e("v_lshl_add_u32 v5, v1, 1, s61")
    e("v_cmp_eq_u32 vcc, 0, v2")
    e("s_and_saveexec_b64 s[58:59], vcc")
    for p in range(4):
        e(f"buffer_store_short v{100+p}, v5, s[48:51], 0 offen offset:{32*p}")
    e("s_branch ka_kernel_end")
    lab("ka_ffn")
    e("s_sub_u32 s57, s2, 256")
    e("s_cmp_ge_u32 s57, 88")
    e("s_cselect_b32 s60, 1, 0")
    e("s_cselect_b32 s44, s32, s30")
    e("s_cselect_b32 s45, s33, s31")
    e("s_mov_b32 s46, 1409024")
    e("s_mov_b32 s47, 0x00020000")
    e("s_mul_i32 s61, s60, 88")
    e("s_sub_u32 s57, s57, s61")
    e("s_mul_i32 s61, s57, 373")
    e("s_lshr_b32 s61, s61, 12")
    e("s_mul_i32 s62, s61, 11")
    e("s_sub_u32 s62, s57, s62")
    e("s_movk_i32 s52, 2752")
    e("s_lshl_b32 s53, s61, 6")
    e("s_lshl_b32 s54, s62, 8")
    e("s_mul_i32 s55, s61, 11264")
    e("s_mul_i32 s63, s60, 5632")
    e("s_add_u32 s55, s55, s63")
    e("s_lshl_b32 s63, s62, 9")
    e("s_add_u32 s55, s55, s63")
    e(f"s_add_u32 s55, s55, {GUP}")
    srd(60, 16, 1024)
    e("v_add_u32 v5, s53, v0")
    e("v_lshlrev_b32 v5, 1, v5")
    e("buffer_load_ushort v6, v5, s[60:63], 0 offen")
    gemv_issue()
    e("v_lshlrev_b32 v4, 2, v0")
    e("s_waitcnt vmcnt(4)")
    e("v_lshlrev_b32 v6, 16, v6")
    e("v_cmp_gt_u32 vcc, 64, v0")
    e("s_and_saveexec_b64 s[58:59], vcc")
    e("ds_write_b32 v4, v6")
    e("s_mov_b64 exec, s[58:59]")
    gemv_finish(name)
    epilogue(name)

def ffn_down(name):
    e("s_and_b32 s62, s57, 3")
    e("s_lshr_b32 s61, s57, 2")
    srd(44, 34, 1409024)
    e("s_movk_i32 s52, 1024")
    e("s_lshl_b32 s53, s61, 6")
    e("s_lshl_b32 s54, s62, 8")
    e("s_lshl_b32 s55, s61, 11")
    e("s_lshl_b32 s63, s62, 9")
    e("s_add_u32 s55, s55, s63")
    e(f"s_add_u32 s55, s55, {BP}")
    gemv_issue()
    e("v_add_u32 v5, s53, v0")
    e("v_lshlrev_b32 v6, 2, v5")
    e(f"v_add_u32 v6, {GUP}, v6")
    for p in range(8):
        e(f"buffer_load_dword v{8+p}, v6, s[48:51], 0 offen")
        e("v_add_u32 v7, 5632, v6")
        e(f"buffer_load_dword v{16+p}, v7, s[48:51], 0 offen")
        if p < 7:
            e("v_add_u32 v6, 11264, v6")
    e("s_waitcnt vmcnt(0)")
    for p in range(1, 8):
        e(f"v_add_f32 v8, v8, v{8+p}")
        e(f"v_add_f32 v16, v16, v{16+p}")
    bf16_round(8, 8)
    bf16_round(16, 16)
    e("v_mul_f32 v9, 0xbfb8aa3b, v8")
    e("v_exp_f32 v9, v9")
    e("s_nop 0")
    e("v_add_f32 v9, 1.0, v9")
    e("v_rcp_f32 v9, v9")
    e("s_nop 0")
    e("v_mul_f32 v9, v8, v9")
    bf16_round(9, 9)
    e("v_mul_f32 v9, v9, v16")
    bf16_round(9, 9)
    e("v_cmp_gt_u32 vcc, 1376, v5")
    e("s_nop 1")
    e("v_cndmask_b32 v9, 0, v9, vcc")
    e("v_lshlrev_b32 v4, 2, v0")
    e("v_cmp_gt_u32 vcc, 64, v0")
    e("s_and_saveexec_b64 s[58:59], vcc")
    e("ds_write_b32 v4, v9")
    e("s_mov_b64 exec, s[58:59]")
    gemv_finish(name)

CSTR = 1040
PSTR = KPW * 2 + 16
LDS_ST = 0
LDS_P = 2048
LDS_Q = 8192
LDS_C = LDS_Q + 32 * CSTR
LDS_K3 = LDS_C + KPW * CSTR

def k3():
    name = "k3_kernel"
    prologue(name, NSPLIT + 88)
    e(f"s_cmp_ge_u32 s2, {NSPLIT}")
    e("s_cbranch_scc0 k3_att")
    e(f"s_sub_u32 s57, s2, {NSPLIT}")
    ffn_down(name)
    e("s_branch k3_kernel_end")
    lab("k3_att")
    srd(44, 18, 8388608)
    stamp()
    e("v_lshrrev_b32 v1, 6, v0")
    e("v_and_b32 v2, 63, v0")
    e("s_nop 0")
    e("v_readfirstlane_b32 s60, v1")
    e(f"s_mul_i32 s61, s2, {KPW*1024}")
    e("s_lshl_b32 s62, s60, 14")
    e("s_add_u32 s61, s61, s62")
    e("v_lshlrev_b32 v3, 4, v2")
    e(f"s_mul_i32 s63, s60, {16*CSTR}")
    e(f"s_add_u32 s63, s63, {LDS_C}")
    for r in range(16):
        e(f"s_add_u32 s64, s63, {r*CSTR}")
        e("s_mov_b32 m0, s64")
        e(f"s_add_u32 s65, s61, {r*1024}")
        e("buffer_load_dwordx4 v3, s[44:47], s65 offen lds")
    e(f"s_mul_i32 s63, s60, {8*CSTR}")
    e(f"s_add_u32 s63, s63, {LDS_Q}")
    e("s_lshl_b32 s61, s60, 13")
    e(f"s_add_u32 s61, s61, {QABS}")
    for r in range(8):
        e(f"s_add_u32 s64, s63, {r*CSTR}")
        e("s_mov_b32 m0, s64")
        e(f"s_add_u32 s65, s61, {r*1024}")
        e("buffer_load_dwordx4 v3, s[48:51], s65 offen lds")
    e("v_and_b32 v4, 15, v2")
    e("v_lshrrev_b32 v5, 4, v2")
    e("v_lshlrev_b32 v6, 4, v1")
    e("v_add_u32 v6, v6, v4")
    e(f"v_mul_u32_u24 v6, {CSTR}, v6")
    e("v_lshl_add_u32 v6, v5, 4, v6")
    e(f"v_add_u32 v6, {LDS_C}, v6")
    e(f"v_mul_u32_u24 v7, {CSTR}, v4")
    e("v_lshl_add_u32 v7, v5, 4, v7")
    e(f"v_add_u32 v7, {LDS_Q}, v7")
    for i in range(8):
        e(f"v_mov_b32 v{16+i}, 0")
    e("s_waitcnt vmcnt(0)")
    e("s_barrier")
    stamp()
    for t in range(16):
        e(f"ds_read_b128 v[{32+4*(t%2)*3}:{35+4*(t%2)*3}], v6 offset:{64*t}")
        e(f"ds_read_b128 v[{36+4*(t%2)*3}:{39+4*(t%2)*3}], v7 offset:{64*t}")
        e(f"ds_read_b128 v[{40+4*(t%2)*3}:{43+4*(t%2)*3}], v7 offset:{64*t+16*CSTR}")
        e("s_waitcnt lgkmcnt(0)")
        b = 32 + 12 * (t % 2)
        e(f"v_mfma_f32_16x16x32_bf16 v[16:19], v[{b}:{b+3}], v[{b+4}:{b+7}], v[16:19]")
        e(f"v_mfma_f32_16x16x32_bf16 v[20:23], v[{b}:{b+3}], v[{b+8}:{b+11}], v[20:23]")
    e("s_nop 15")
    stamp()
    e("v_max_f32 v24, v16, v17")
    e("v_max3_f32 v24, v24, v18, v19")
    e("v_max_f32 v25, v20, v21")
    e("v_max3_f32 v25, v25, v22, v23")
    e("v_xor_b32 v26, 16, v2")
    e("v_lshlrev_b32 v26, 2, v26")
    e("ds_bpermute_b32 v27, v26, v24")
    e("ds_bpermute_b32 v28, v26, v25")
    e("s_waitcnt lgkmcnt(0)")
    e("v_max_f32 v24, v24, v27")
    e("v_max_f32 v25, v25, v28")
    e("v_xor_b32 v26, 32, v2")
    e("v_lshlrev_b32 v26, 2, v26")
    e("ds_bpermute_b32 v27, v26, v24")
    e("ds_bpermute_b32 v28, v26, v25")
    e("s_waitcnt lgkmcnt(0)")
    e("v_max_f32 v24, v24, v27")
    e("v_max_f32 v25, v25, v28")
    e("v_lshlrev_b32 v26, 7, v1")
    e("v_lshl_add_u32 v26, v4, 2, v26")
    e(f"ds_write_b32 v26, v24 offset:{LDS_ST}")
    e(f"ds_write_b32 v26, v25 offset:{LDS_ST+64}")
    e("s_waitcnt lgkmcnt(0)")
    e("s_barrier")
    e("v_lshlrev_b32 v26, 2, v4")
    for w in range(4):
        e(f"ds_read_b32 v{40+w}, v26 offset:{LDS_ST+128*w}")
        e(f"ds_read_b32 v{44+w}, v26 offset:{LDS_ST+128*w+64}")
    e("s_waitcnt lgkmcnt(0)")
    e("v_max_f32 v24, v40, v41")
    e("v_max3_f32 v24, v24, v42, v43")
    e("v_max_f32 v25, v44, v45")
    e("v_max3_f32 v25, v25, v46, v47")
    C1 = 0x3e0293ee
    e("s_mov_b32 s66, C1VAL")
    for i in range(4):
        e(f"v_sub_f32 v{16+i}, v{16+i}, v24")
        e(f"v_sub_f32 v{20+i}, v{20+i}, v25")
    for i in range(8):
        e(f"v_mul_f32 v{16+i}, s66, v{16+i}")
    for i in range(8):
        e(f"v_exp_f32 v{16+i}, v{16+i}")
    e("s_nop 1")
    e("v_add_f32 v27, v16, v17")
    e("v_add_f32 v28, v18, v19")
    e("v_add_f32 v27, v27, v28")
    e("v_add_f32 v28, v20, v21")
    e("v_add_f32 v29, v22, v23")
    e("v_add_f32 v28, v28, v29")
    e("v_cvt_pk_bf16_f32 v32, v16, v17")
    e("v_cvt_pk_bf16_f32 v33, v18, v19")
    e("v_cvt_pk_bf16_f32 v34, v20, v21")
    e("v_cvt_pk_bf16_f32 v35, v22, v23")
    e(f"v_mul_u32_u24 v36, {PSTR}, v4")
    e("v_lshlrev_b32 v37, 5, v1")
    e("v_add_u32 v36, v36, v37")
    e("v_lshl_add_u32 v36, v5, 3, v36")
    e(f"ds_write_b64 v36, v[32:33] offset:{LDS_P}")
    e(f"ds_write_b64 v36, v[34:35] offset:{LDS_P+16*PSTR}")
    e("v_xor_b32 v26, 16, v2")
    e("v_lshlrev_b32 v26, 2, v26")
    e("ds_bpermute_b32 v29, v26, v27")
    e("ds_bpermute_b32 v30, v26, v28")
    e("s_waitcnt lgkmcnt(0)")
    e("v_add_f32 v27, v27, v29")
    e("v_add_f32 v28, v28, v30")
    e("v_xor_b32 v26, 32, v2")
    e("v_lshlrev_b32 v26, 2, v26")
    e("ds_bpermute_b32 v29, v26, v27")
    e("ds_bpermute_b32 v30, v26, v28")
    e("s_waitcnt lgkmcnt(0)")
    e("v_add_f32 v27, v27, v29")
    e("v_add_f32 v28, v28, v30")
    e("v_lshlrev_b32 v26, 7, v1")
    e("v_lshl_add_u32 v26, v4, 2, v26")
    e(f"ds_write_b32 v26, v27 offset:{LDS_ST+512}")
    e(f"ds_write_b32 v26, v28 offset:{LDS_ST+512+64}")
    e("s_waitcnt lgkmcnt(0)")
    e("s_barrier")
    e("v_lshlrev_b32 v26, 2, v4")
    for w in range(4):
        e(f"ds_read_b32 v{40+w}, v26 offset:{LDS_ST+512+128*w}")
        e(f"ds_read_b32 v{44+w}, v26 offset:{LDS_ST+512+128*w+64}")
    e("s_waitcnt lgkmcnt(0)")
    e("v_add_f32 v40, v40, v41")
    e("v_add_f32 v42, v42, v43")
    e("v_add_f32 v40, v40, v42")
    e("v_add_f32 v44, v44, v45")
    e("v_add_f32 v46, v46, v47")
    e("v_add_f32 v44, v44, v46")
    e("s_lshl_b32 s61, s2, 8")
    e(f"s_add_u32 s61, s61, {AM}")
    e("v_lshl_add_u32 v26, v4, 3, s61")
    e("v_cmp_gt_u32 vcc, 16, v0")
    e("s_and_saveexec_b64 s[58:59], vcc")
    e("v_mov_b32 v41, v40")
    e("v_mov_b32 v40, v24")
    e("v_mov_b32 v45, v44")
    e("v_mov_b32 v44, v25")
    e("buffer_store_dwordx2 v[40:41], v26, s[48:51], 0 offen")
    e("buffer_store_dwordx2 v[44:45], v26, s[48:51], 0 offen offset:128")
    e("s_mov_b64 exec, s[58:59]")
    stamp()
    e("v_and_b32 v4, 31, v2")
    e("v_lshrrev_b32 v5, 5, v2")
    e(f"v_mul_u32_u24 v6, {PSTR}, v4")
    e("v_lshl_add_u32 v6, v5, 4, v6")
    e(f"v_add_u32 v6, {LDS_P}, v6")
    e("v_and_b32 v7, 15, v2")
    e("v_lshrrev_b32 v8, 2, v7")
    e("v_lshl_add_u32 v8, v5, 3, v8")
    e(f"v_mul_u32_u24 v8, {CSTR}, v8")
    e("v_and_b32 v9, 3, v7")
    e("v_lshlrev_b32 v9, 3, v9")
    e("v_bfe_u32 v10, v2, 4, 1")
    e("v_lshl_add_u32 v9, v10, 5, v9")
    e("v_add_u32 v8, v8, v9")
    e("v_lshl_add_u32 v8, v1, 8, v8")
    e(f"v_add_u32 v8, {LDS_C}, v8")
    for i in range(64):
        e(f"v_mov_b32 v{64+i}, 0")
    for j in range(KPW // 16):
        e(f"ds_read_b128 v[12:15], v6 offset:{32*j}")
        for n in range(4):
            e(f"ds_read_b64_tr_b16 v[{16+4*n}:{17+4*n}], v8 offset:{16*j*CSTR + 64*n}")
            e(f"ds_read_b64_tr_b16 v[{18+4*n}:{19+4*n}], v8 offset:{(16*j+4)*CSTR + 64*n}")
        e("s_waitcnt lgkmcnt(0)")
        for n in range(4):
            e(f"v_mfma_f32_32x32x16_bf16 v[{64+16*n}:{79+16*n}], v[12:15], v[{16+4*n}:{19+4*n}], v[{64+16*n}:{79+16*n}]")
    e("s_nop 15")
    e("s_nop 3")
    stamp()
    e("s_lshl_b32 s61, s2, 16")
    e(f"s_add_u32 s61, s61, {AP}")
    e("v_lshlrev_b32 v9, 13, v5")
    e("v_lshl_add_u32 v9, v4, 2, v9")
    e("v_lshl_add_u32 v9, v1, 9, v9")
    e("v_add_u32 v9, s61, v9")
    for n in range(4):
        for i in range(16):
            h = 8 * (i // 4) + (i % 4)
            off = h * 2048 + n * 128
            if off < 4096:
                e(f"buffer_store_dword v{64+16*n+i}, v9, s[48:51], 0 offen offset:{off}")
            else:
                e(f"v_add_u32 v10, {off}, v9")
                e(f"buffer_store_dword v{64+16*n+i}, v10, s[48:51], 0 offen")
    e("s_waitcnt vmcnt(0)")
    stamp()
    stamp_flush(name)
    epilogue(name)

def k4():
    name = "k4_kernel"
    prologue(name, 256)
    e("s_lshr_b32 s57, s2, 3")
    e("s_and_b32 s60, s2, 7")
    srd(44, 24, 4194304)
    e("s_movk_i32 s52, 8192")
    e("s_lshl_b32 s53, s60, 6")
    e("s_lshl_b32 s54, s57, 8")
    e("s_lshl_b32 s55, s60, 14")
    e("s_lshl_b32 s61, s57, 9")
    e("s_add_u32 s55, s55, s61")
    e(f"s_add_u32 s55, s55, {CP}")
    gemv_issue()
    e("v_lshrrev_b32 v1, 6, v0")
    e("v_and_b32 v2, 63, v0")
    e("s_lshl_b32 s61, s57, 3")
    e(f"s_add_u32 s61, s61, {AM}")
    e("v_lshl_add_u32 v3, v2, 8, s61")
    e("buffer_load_dwordx2 v[4:5], v3, s[48:51], 0 offen")
    e("v_add_u32 v3, 16384, v3")
    e("buffer_load_dwordx2 v[6:7], v3, s[48:51], 0 offen")
    e("s_waitcnt vmcnt(0)")
    e("v_max_f32 v8, v4, v6")
    e("s_nop 1")
    for r in (8, 4, 2, 1):
        e(f"v_max_f32_dpp v8, v8, v8 row_ror:{r} row_mask:0xf bank_mask:0xf")
        e("s_nop 1")
    e("v_readlane_b32 s61, v8, 0")
    e("v_readlane_b32 s62, v8, 16")
    e("v_readlane_b32 s63, v8, 32")
    e("v_readlane_b32 s64, v8, 48")
    e("s_nop 1")
    e("v_mov_b32 v8, s61")
    e("v_max_f32 v8, s62, v8")
    e("v_max_f32 v8, s63, v8")
    e("v_max_f32 v8, s64, v8")
    e("s_mov_b32 s66, C1VAL")
    e("v_sub_f32 v4, v4, v8")
    e("v_sub_f32 v6, v6, v8")
    e("v_mul_f32 v4, s66, v4")
    e("v_mul_f32 v6, s66, v6")
    e("v_exp_f32 v4, v4")
    e("v_exp_f32 v6, v6")
    e("s_nop 1")
    e("v_mul_f32 v9, v4, v5")
    e("v_fmac_f32 v9, v6, v7")
    e("s_nop 1")
    for r in (8, 4, 2, 1):
        e(f"v_add_f32_dpp v9, v9, v9 row_ror:{r} row_mask:0xf bank_mask:0xf")
        e("s_nop 1")
    e("v_readlane_b32 s61, v9, 0")
    e("v_readlane_b32 s62, v9, 16")
    e("v_readlane_b32 s63, v9, 32")
    e("v_readlane_b32 s64, v9, 48")
    e("s_nop 1")
    e("v_mov_b32 v9, s61")
    e("v_add_f32 v9, s62, v9")
    e("v_add_f32 v9, s63, v9")
    e("v_add_f32 v9, s64, v9")
    e("v_rcp_f32 v9, v9")
    e("s_nop 1")
    e("v_mul_f32 v4, v4, v9")
    e("v_mul_f32 v6, v6, v9")
    e("v_readfirstlane_b32 s60, v1")
    e("s_and_b32 s61, s2, 7")
    e("s_lshl_b32 s61, s61, 8")
    e("s_lshl_b32 s62, s57, 11")
    e("s_add_u32 s61, s61, s62")
    e(f"s_add_u32 s61, s61, {AP}")
    e("s_lshl_b32 s62, s60, 21")
    e("s_add_u32 s61, s61, s62")
    e("v_lshl_add_u32 v3, v2, 2, s61")
    for i in range(32):
        e(f"buffer_load_dword v{16+i}, v3, s[48:51], 0 offen")
        if i < 31:
            e("v_add_u32 v3, 0x10000, v3")
    e("s_lshl_b32 s62, s60, 5")
    e("s_and_b32 s63, s62, 63")
    e("s_cmp_ge_u32 s60, 2")
    e("v_cndmask_b32 v10, v4, v6, scc" if False else "s_cselect_b64 vcc, -1, 0")
    e("s_nop 1")
    e("v_cndmask_b32 v10, v4, v6, vcc")
    e("v_mov_b32 v11, 0")
    e("s_waitcnt vmcnt(0)")
    for i in range(32):
        e(f"s_add_u32 s64, s63, {i}")
        e("s_nop 0")
        e("v_readlane_b32 s65, v10, s64")
        e("s_nop 1")
        e(f"v_fmac_f32 v11, s65, v{16+i}")
    e("v_lshlrev_b32 v3, 2, v0")
    e("ds_write_b32 v3, v11 offset:16384")
    e("s_waitcnt lgkmcnt(0)")
    e("s_barrier")
    e("v_cmp_gt_u32 vcc, 64, v0")
    e("s_and_saveexec_b64 s[58:59], vcc")
    e("ds_read_b32 v12, v3 offset:16384")
    e("ds_read_b32 v13, v3 offset:16640")
    e("ds_read_b32 v14, v3 offset:16896")
    e("ds_read_b32 v15, v3 offset:17152")
    e("s_waitcnt lgkmcnt(0)")
    e("v_add_f32 v12, v12, v13")
    e("v_add_f32 v14, v14, v15")
    e("v_add_f32 v12, v12, v14")
    e("ds_write_b32 v3, v12")
    e("s_mov_b64 exec, s[58:59]")
    gemv_finish(name)
    epilogue(name)

def k5():
    name = "k5_kernel"
    prologue(name, 256)
    e("s_and_b32 s62, s2, 3")
    e("s_lshr_b32 s61, s2, 2")
    srd(44, 26, 4194304)
    e("s_movk_i32 s52, 1024")
    e("s_lshl_b32 s53, s61, 6")
    e("s_lshl_b32 s54, s62, 8")
    e("s_lshl_b32 s55, s61, 11")
    e("s_lshl_b32 s63, s62, 9")
    e("s_add_u32 s55, s55, s63")
    e(f"s_add_u32 s55, s55, {OPP}")
    gemv_issue()
    e("v_add_u32 v5, s53, v0")
    e("v_lshlrev_b32 v6, 2, v5")
    e(f"v_add_u32 v6, {CP}, v6")
    for p in range(8):
        e(f"buffer_load_dword v{8+p}, v6, s[48:51], 0 offen")
        if p < 7:
            e("v_add_u32 v6, 16384, v6")
    e("s_waitcnt vmcnt(0)")
    for p in range(1, 8):
        e(f"v_add_f32 v8, v8, v{8+p}")
    bf16_round(8, 8)
    e("v_lshlrev_b32 v4, 2, v0")
    e("v_cmp_gt_u32 vcc, 64, v0")
    e("s_and_saveexec_b64 s[58:59], vcc")
    e("ds_write_b32 v4, v8")
    e("s_mov_b64 exec, s[58:59]")
    gemv_finish(name)
    epilogue(name)

def k6():
    name = "k6_kernel"
    prologue(name, 2)
    srd(44, 16, 1024)
    srd(60, 36, 1024)
    srd(64, 38, 1024)
    e("v_and_b32 v2, 63, v0")
    e("v_lshlrev_b32 v3, 4, v2")
    e("buffer_load_dwordx4 v[4:7], v3, s[44:47], 0 offen")
    e("buffer_load_dwordx4 v[8:11], v3, s[60:63], 0 offen")
    e("s_lshl_b32 s3, s2, 8")
    e("v_add_u32 v1, s3, v0")
    e("v_lshlrev_b32 v12, 2, v1")
    e(f"v_add_u32 v13, {OPP}, v12")
    for p in range(64):
        e(f"buffer_load_dword v{32+p}, v13, s[48:51], 0 offen" + (f" offset:{2048*(p%2)}" if p % 2 else ""))
        if p % 2 == 1 and p < 63:
            e("v_add_u32 v13, 4096, v13")
    e("s_waitcnt vmcnt(62)")
    e("v_mov_b32 v14, 0")
    for d in range(4):
        e(f"v_lshlrev_b32 v15, 16, v{4+d}")
        e(f"v_lshlrev_b32 v16, 16, v{8+d}")
        e("v_mul_f32 v15, v15, v16")
        bf16_round(15, 15)
        e("v_add_f32 v14, v14, v15")
        e(f"v_and_b32 v15, 0xffff0000, v{4+d}")
        e(f"v_and_b32 v16, 0xffff0000, v{8+d}")
        e("v_mul_f32 v15, v15, v16")
        bf16_round(15, 15)
        e("v_add_f32 v14, v14, v15")
    e("s_nop 1")
    for r in (8, 4, 2, 1):
        e(f"v_add_f32_dpp v14, v14, v14 row_ror:{r} row_mask:0xf bank_mask:0xf")
        e("s_nop 1")
    e("v_readlane_b32 s4, v14, 0")
    e("v_readlane_b32 s5, v14, 16")
    e("v_readlane_b32 s6, v14, 32")
    e("v_readlane_b32 s7, v14, 48")
    e("s_nop 1")
    e("v_mov_b32 v14, s4")
    e("v_add_f32 v14, s5, v14")
    e("v_add_f32 v14, s6, v14")
    e("v_add_f32 v14, s7, v14")
    bf16_round(14, 14)
    e("v_mul_f32 v14, 0xbfb8aa3b, v14")
    e("v_exp_f32 v14, v14")
    e("s_nop 0")
    e("v_add_f32 v14, 1.0, v14")
    e("v_rcp_f32 v14, v14")
    e("s_nop 0")
    bf16_round(14, 14)
    e("s_waitcnt vmcnt(0)")
    for st in (32, 16, 8, 4, 2, 1):
        for i in range(st):
            e(f"v_add_f32 v{32+i}, v{32+i}, v{32+i+st}")
    bf16_round(32, 32)
    e(f"v_add_u32 v13, {BP}, v12")
    for p in range(22):
        e(f"buffer_load_dword v{40+p}, v13, s[48:51], 0 offen" + (f" offset:{2048*(p%2)}" if p % 2 else ""))
        if p % 2 == 1 and p < 21:
            e("v_add_u32 v13, 4096, v13")
    e("s_waitcnt vmcnt(0)")
    for p in range(1, 22):
        e(f"v_add_f32 v40, v40, v{40+p}")
    bf16_round(40, 40)
    e("v_mul_f32 v32, v14, v32")
    bf16_round(32, 32)
    e("v_sub_f32 v15, 1.0, v14")
    bf16_round(15, 15)
    e("v_mul_f32 v40, v15, v40")
    bf16_round(40, 40)
    e("v_add_f32 v32, v32, v40")
    e("v_cvt_pk_bf16_f32 v32, v32, v32")
    e("v_lshlrev_b32 v12, 1, v1")
    e("buffer_store_short v32, v12, s[64:67], 0 offen")
    epilogue(name)

import struct, math
c1 = (128 ** -0.5) * math.log2(math.e)
C1HEX = "0x%08x" % struct.unpack("<I", struct.pack("<f", c1))[0]

hdr = []
hdr.append("; @launch kernel=ka_kernel grid=(432,1,1) block=(256,1,1) lds=16384")
hdr.append(f"; @launch kernel=k3_kernel grid=({NSPLIT+88},1,1) block=(256,1,1) lds={LDS_K3}")
hdr.append("; @launch kernel=k4_kernel grid=(256,1,1) block=(256,1,1) lds=20480")
hdr.append("; @launch kernel=k5_kernel grid=(256,1,1) block=(256,1,1) lds=16384")
hdr.append("; @launch kernel=k6_kernel grid=(2,1,1) block=(256,1,1) lds=0")
hdr.append('.amdgcn_target "amdgcn-amd-amdhsa--gfx950"')
hdr.append(".text")
ka(); k3(); k4(); k5(); k6()
L.append('.section .rodata,"a"')
for n in ("ka_kernel", "k3_kernel", "k4_kernel", "k5_kernel", "k6_kernel"):
    L.append(".p2align 6")
    kd(n)
txt = "\n".join(hdr + L) + "\n"
txt = txt.replace("C1VAL", C1HEX)
open(OUT, "w").write(txt)
print("wrote", OUT, len(txt))
```

```python
import sys

STAMPARG = len(sys.argv) > 2
OUT = sys.argv[1] if len(sys.argv) > 1 else "gated_mix__compressed_kv_cla__swiglu_ffn__decode.s"

QP   = 0x000000
GUP  = 0x040000
QABS = 0x080000
BP   = 0x0A0000
AM   = 0x0C0000
CP   = 0x0E0000
OPP  = 0x120000
AP   = 0x200000
WS_SIZE = 0x1000000
NSPLIT = 128
NPF = 342
KPW = 8192 // NSPLIT

L = []
def e(s): L.append("    " + s)
def lab(s): L.append(s + ":")
def comment(s): L.append("    ; " + s)

def srd(dst, ptr, size):
    e(f"s_mov_b32 s{dst}, s{ptr}")
    e(f"s_mov_b32 s{dst+1}, s{ptr+1}")
    e(f"s_mov_b32 s{dst+2}, {size}")
    e(f"s_mov_b32 s{dst+3}, 0x00020000")

def prologue(name, nwg):
    L.append(".globl %s" % name)
    L.append(".p2align 8")
    L.append(".type %s,@function" % name)
    lab(name)
    e(f"s_cmp_ge_u32 s2, {nwg}")
    e(f"s_cbranch_scc1 {name}_end")
    e("s_load_dwordx16 s[16:31], s[0:1], 0")
    e("s_load_dwordx8 s[32:39], s[0:1], 64")
    e("s_load_dwordx4 s[40:43], s[0:1], 96")
    e("s_waitcnt lgkmcnt(0)")
    srd(48, 42, WS_SIZE)

def epilogue(name):
    lab(name + "_end")
    e("s_endpgm")

STAMP = STAMPARG
nstamp = [0]
def stamp():
    if not STAMP: return
    i = nstamp[0]; nstamp[0] += 1
    e(f"s_memtime s[{70+2*i}:{71+2*i}]")
    e("s_waitcnt lgkmcnt(0)")
def stamp_flush(name):
    if not STAMP: return
    n = nstamp[0]
    e("s_cmp_lg_u32 s2, 0")
    e(f"s_cbranch_scc1 {name}_end")
    srd(60, 40, 256)
    e("v_cmp_eq_u32 vcc, 0, v0")
    e("s_and_saveexec_b64 s[58:59], vcc")
    e("v_mov_b32 v1, 0")
    for i in range(n):
        e(f"v_mov_b32 v2, s{70+2*i}")
        e(f"buffer_store_dword v2, v1, s[60:63], 0 offen offset:{4*i}")
    nstamp[0] = 0

def bf16_round(vd, vs):
    e(f"v_cvt_pk_bf16_f32 v{vd}, v{vs}, v{vs}")
    e(f"v_lshlrev_b32 v{vd}, 16, v{vd}")

def gemv_issue():
    e("v_lshrrev_b32 v1, 4, v0")
    e("v_and_b32 v2, 15, v0")
    e("v_add_u32 v3, s53, v1")
    e("v_mul_lo_u32 v3, v3, s52")
    e("v_lshl_add_u32 v3, v2, 4, v3")
    e("v_add_u32 v3, s54, v3")
    e("s_lshl_b32 s56, s52, 4")
    for p in range(4):
        e(f"buffer_load_dwordx4 v[{108+4*p}:{111+4*p}], v3, s[44:47], 0 offen")
        if p < 3:
            e("v_add_u32 v3, s56, v3")

def gemv_finish(name):
    e("s_waitcnt lgkmcnt(0)")
    e("s_barrier")
    e("v_lshrrev_b32 v1, 4, v0")
    e("v_and_b32 v2, 15, v0")
    e("v_lshlrev_b32 v4, 2, v1")
    for p in range(4):
        e(f"ds_read_b32 v{24+p}, v4 offset:{64*p}")
    for j in range(8):
        e(f"v_mov_b32 v{28+j}, 0")
    e("s_waitcnt vmcnt(0) lgkmcnt(0)")
    for p in range(4):
        for d in range(4):
            e(f"v_lshlrev_b32 v36, 16, v{108+4*p+d}")
            e(f"v_and_b32 v37, 0xffff0000, v{108+4*p+d}")
            e(f"v_fmac_f32 v{28+2*d}, v36, v{24+p}")
            e(f"v_fmac_f32 v{29+2*d}, v37, v{24+p}")
    e("v_lshlrev_b32 v4, 9, v1")
    e("v_lshl_add_u32 v4, v2, 5, v4")
    e("ds_write_b128 v4, v[28:31] offset:1024")
    e("ds_write_b128 v4, v[32:35] offset:1040")
    e("s_waitcnt lgkmcnt(0)")
    e("s_barrier")
    e("v_cmp_gt_u32 vcc, 128, v0")
    e("s_and_saveexec_b64 s[58:59], vcc")
    e(f"s_cbranch_execz {name}_end")
    e("v_lshlrev_b32 v4, 2, v0")
    for i in range(16):
        e(f"ds_read_b32 v{8+i}, v4 offset:{1024+512*i}")
    e("s_waitcnt lgkmcnt(0)")
    for st in (8, 4, 2, 1):
        for i in range(st):
            e(f"v_add_f32 v{8+i}, v{8+i}, v{8+i+st}")
    e("v_add_u32 v4, s55, v4")
    e("buffer_store_dword v8, v4, s[48:51], 0 offen")

def kd(name, vgpr=256, sgpr=96):
    L.append(".amdhsa_kernel %s" % name)
    L.append("  .amdhsa_next_free_vgpr %d" % vgpr)
    L.append("  .amdhsa_next_free_sgpr %d" % sgpr)
    L.append("  .amdhsa_accum_offset %d" % ((vgpr + 3) // 4 * 4))
    L.append("  .amdhsa_group_segment_fixed_size 0")
    L.append("  .amdhsa_kernarg_size 112")
    L.append("  .amdhsa_user_sgpr_count 2")
    L.append("  .amdhsa_user_sgpr_kernarg_segment_ptr 1")
    L.append("  .amdhsa_system_sgpr_workgroup_id_x 1")
    L.append(".end_amdhsa_kernel")

def ka():
    name = "ka_kernel"
    prologue(name, 432)
    e("s_cmp_ge_u32 s2, 256")
    e("s_cbranch_scc1 ka_ffn")
    e("s_and_b32 s57, s2, 31")
    e("s_lshr_b32 s60, s2, 5")
    srd(44, 22, 4194304)
    srd(64, 20, 4194304)
    srd(68, 16, 1024)
    e("v_lshrrev_b32 v1, 4, v0")
    e("v_and_b32 v2, 15, v0")
    e("v_lshlrev_b32 v5, 4, v0")
    e("buffer_load_dwordx4 v[8:11], v5, s[68:71], 0 offen")
    e("s_lshl_b32 s63, s57, 8")
    e("v_lshlrev_b32 v5, 13, v1")
    e("v_lshl_add_u32 v5, v2, 4, v5")
    e("v_add_u32 v5, s63, v5")
    for i in range(32):
        e(f"buffer_load_dwordx4 v[{128+4*i}:{131+4*i}], v5, s[64:67], 0 offen")
        if i < 31:
            e("v_add_u32 v5, 0x20000, v5")
    e("s_lshl_b32 s62, s60, 6")
    e("v_add_u32 v5, s62, v1")
    e("v_lshlrev_b32 v5, 13, v5")
    e("v_lshl_add_u32 v5, v2, 4, v5")
    e("v_add_u32 v5, s63, v5")
    for p in range(4):
        e(f"buffer_load_dwordx4 v[{80+4*p}:{83+4*p}], v5, s[44:47], 0 offen")
        if p < 3:
            e("v_add_u32 v5, 0x20000, v5")
    e("s_waitcnt vmcnt(36)")
    for d in range(4):
        e(f"v_lshlrev_b32 v{12+2*d}, 16, v{8+d}")
        e(f"v_and_b32 v{13+2*d}, 0xffff0000, v{8+d}")
    e("v_lshlrev_b32 v4, 5, v0")
    e("v_cmp_gt_u32 vcc, 64, v0")
    e("s_and_saveexec_b64 s[58:59], vcc")
    e("ds_write_b128 v4, v[12:15] offset:12288")
    e("ds_write_b128 v4, v[16:19] offset:12304")
    e("s_mov_b64 exec, s[58:59]")
    e("s_waitcnt lgkmcnt(0)")
    e("s_barrier")
    e("v_lshlrev_b32 v4, 2, v1")
    for i in range(32):
        e(f"ds_read_b32 v{44+i}, v4 offset:{12288+64*i}")
    for j in range(8):
        e(f"v_mov_b32 v{28+j}, 0")
    for i in range(32):
        e(f"s_waitcnt vmcnt({35-i}) lgkmcnt(0)" if i == 0 else f"s_waitcnt vmcnt({35-i})")
        for d in range(4):
            e(f"v_lshlrev_b32 v36, 16, v{128+4*i+d}")
            e(f"v_and_b32 v37, 0xffff0000, v{128+4*i+d}")
            e(f"v_fmac_f32 v{28+2*d}, v36, v{44+i}")
            e(f"v_fmac_f32 v{29+2*d}, v37, v{44+i}")
    e("v_lshlrev_b32 v4, 9, v1")
    e("v_lshl_add_u32 v4, v2, 5, v4")
    e("ds_write_b128 v4, v[28:31] offset:1024")
    e("ds_write_b128 v4, v[32:35] offset:1040")
    e("s_waitcnt lgkmcnt(0)")
    e("s_barrier")
    e("v_and_b32 v4, 127, v0")
    e("v_lshlrev_b32 v4, 2, v4")
    for i in range(16):
        e(f"ds_read_b32 v{8+i}, v4 offset:{1024+512*i}")
    e("s_waitcnt lgkmcnt(0)")
    for st in (8, 4, 2, 1):
        for i in range(st):
            e(f"v_add_f32 v{8+i}, v{8+i}, v{8+i+st}")
    bf16_round(8, 8)
    e("ds_write_b32 v4, v8")
    e("s_waitcnt lgkmcnt(0)")
    e("s_barrier")
    e("v_lshlrev_b32 v4, 5, v2")
    e("ds_read_b128 v[8:11], v4")
    e("ds_read_b128 v[12:15], v4 offset:16")
    e("s_waitcnt vmcnt(0) lgkmcnt(0)")
    for p in range(4):
        e(f"v_mov_b32 v{100+p}, 0")
        for d in range(4):
            e(f"v_lshlrev_b32 v36, 16, v{80+4*p+d}")
            e(f"v_and_b32 v37, 0xffff0000, v{80+4*p+d}")
            e(f"v_fmac_f32 v{100+p}, v36, v{8+2*d}")
            e(f"v_fmac_f32 v{100+p}, v37, v{9+2*d}")
    e("s_nop 1")
    for r in (8, 4, 2, 1):
        for p in range(4):
            e(f"v_add_f32_dpp v{100+p}, v{100+p}, v{100+p} row_ror:{r} row_mask:0xf bank_mask:0xf")
        e("s_nop 1")
    for p in range(4):
        e(f"v_cvt_pk_bf16_f32 v{100+p}, v{100+p}, v{100+p}")
    e("s_lshl_b32 s61, s57, 10")
    e(f"s_add_u32 s61, s61, {QABS}")
    e("s_lshl_b32 s62, s60, 7")
    e("s_add_u32 s61, s61, s62")
    e("v_lshl_add_u32 v5, v1, 1, s61")
    e("v_cmp_eq_u32 vcc, 0, v2")
    e("s_and_saveexec_b64 s[58:59], vcc")
    for p in range(4):
        e(f"buffer_store_short v{100+p}, v5, s[48:51], 0 offen offset:{32*p}")
    e("s_branch ka_kernel_end")
    lab("ka_ffn")
    e("s_sub_u32 s57, s2, 256")
    e("s_cmp_ge_u32 s57, 88")
    e("s_cselect_b32 s60, 1, 0")
    e("s_cselect_b32 s44, s32, s30")
    e("s_cselect_b32 s45, s33, s31")
    e("s_mov_b32 s46, 1409024")
    e("s_mov_b32 s47, 0x00020000")
    e("s_mul_i32 s61, s60, 88")
    e("s_sub_u32 s57, s57, s61")
    e("s_mul_i32 s61, s57, 373")
    e("s_lshr_b32 s61, s61, 12")
    e("s_mul_i32 s62, s61, 11")
    e("s_sub_u32 s62, s57, s62")
    e("s_movk_i32 s52, 2752")
    e("s_lshl_b32 s53, s61, 6")
    e("s_lshl_b32 s54, s62, 8")
    e("s_mul_i32 s55, s61, 11264")
    e("s_mul_i32 s63, s60, 5632")
    e("s_add_u32 s55, s55, s63")
    e("s_lshl_b32 s63, s62, 9")
    e("s_add_u32 s55, s55, s63")
    e(f"s_add_u32 s55, s55, {GUP}")
    srd(60, 16, 1024)
    e("v_add_u32 v5, s53, v0")
    e("v_lshlrev_b32 v5, 1, v5")
    e("buffer_load_ushort v6, v5, s[60:63], 0 offen")
    gemv_issue()
    e("v_lshlrev_b32 v4, 2, v0")
    e("s_waitcnt vmcnt(4)")
    e("v_lshlrev_b32 v6, 16, v6")
    e("v_cmp_gt_u32 vcc, 64, v0")
    e("s_and_saveexec_b64 s[58:59], vcc")
    e("ds_write_b32 v4, v6")
    e("s_mov_b64 exec, s[58:59]")
    gemv_finish(name)
    epilogue(name)

def ffn_down(name):
    e("s_and_b32 s62, s57, 3")
    e("s_lshr_b32 s61, s57, 2")
    srd(44, 34, 1409024)
    e("s_movk_i32 s52, 1024")
    e("s_lshl_b32 s53, s61, 6")
    e("s_lshl_b32 s54, s62, 8")
    e("s_lshl_b32 s55, s61, 11")
    e("s_lshl_b32 s63, s62, 9")
    e("s_add_u32 s55, s55, s63")
    e(f"s_add_u32 s55, s55, {BP}")
    gemv_issue()
    e("v_add_u32 v5, s53, v0")
    e("v_lshlrev_b32 v6, 2, v5")
    e(f"v_add_u32 v6, {GUP}, v6")
    for p in range(8):
        e(f"buffer_load_dword v{8+p}, v6, s[48:51], 0 offen")
        e("v_add_u32 v7, 5632, v6")
        e(f"buffer_load_dword v{16+p}, v7, s[48:51], 0 offen")
        if p < 7:
            e("v_add_u32 v6, 11264, v6")
    e("s_waitcnt vmcnt(0)")
    for p in range(1, 8):
        e(f"v_add_f32 v8, v8, v{8+p}")
        e(f"v_add_f32 v16, v16, v{16+p}")
    bf16_round(8, 8)
    bf16_round(16, 16)
    e("v_mul_f32 v9, 0xbfb8aa3b, v8")
    e("v_exp_f32 v9, v9")
    e("s_nop 0")
    e("v_add_f32 v9, 1.0, v9")
    e("v_rcp_f32 v9, v9")
    e("s_nop 0")
    e("v_mul_f32 v9, v8, v9")
    bf16_round(9, 9)
    e("v_mul_f32 v9, v9, v16")
    bf16_round(9, 9)
    e("v_cmp_gt_u32 vcc, 1376, v5")
    e("s_nop 1")
    e("v_cndmask_b32 v9, 0, v9, vcc")
    e("v_lshlrev_b32 v4, 2, v0")
    e("v_cmp_gt_u32 vcc, 64, v0")
    e("s_and_saveexec_b64 s[58:59], vcc")
    e("ds_write_b32 v4, v9")
    e("s_mov_b64 exec, s[58:59]")
    gemv_finish(name)

CSTR = 1040
PSTR = KPW * 2 + 16
LDS_ST = 0
LDS_P = 2048
LDS_Q = 8192
LDS_C = LDS_Q + 32 * CSTR
LDS_K3 = LDS_C + KPW * CSTR

def k3():
    name = "k3_kernel"
    prologue(name, NSPLIT + 88)
    e(f"s_cmp_ge_u32 s2, {NSPLIT}")
    e("s_cbranch_scc0 k3_att")
    e(f"s_sub_u32 s57, s2, {NSPLIT}")
    ffn_down(name)
    e("s_branch k3_kernel_end")
    lab("k3_att")
    srd(44, 18, 8388608)
    stamp()
    e("v_lshrrev_b32 v1, 6, v0")
    e("v_and_b32 v2, 63, v0")
    e("s_nop 0")
    e("v_readfirstlane_b32 s60, v1")
    e(f"s_mul_i32 s61, s2, {KPW*1024}")
    e("s_lshl_b32 s62, s60, 14")
    e("s_add_u32 s61, s61, s62")
    e("v_lshlrev_b32 v3, 4, v2")
    e(f"s_mul_i32 s63, s60, {16*CSTR}")
    e(f"s_add_u32 s63, s63, {LDS_C}")
    for r in range(16):
        e(f"s_add_u32 s64, s63, {r*CSTR}")
        e("s_mov_b32 m0, s64")
        e(f"s_add_u32 s65, s61, {r*1024}")
        e("buffer_load_dwordx4 v3, s[44:47], s65 offen lds")
    e(f"s_mul_i32 s63, s60, {8*CSTR}")
    e(f"s_add_u32 s63, s63, {LDS_Q}")
    e("s_lshl_b32 s61, s60, 13")
    e(f"s_add_u32 s61, s61, {QABS}")
    for r in range(8):
        e(f"s_add_u32 s64, s63, {r*CSTR}")
        e("s_mov_b32 m0, s64")
        e(f"s_add_u32 s65, s61, {r*1024}")
        e("buffer_load_dwordx4 v3, s[48:51], s65 offen lds")
    e("v_and_b32 v4, 15, v2")
    e("v_lshrrev_b32 v5, 4, v2")
    e("v_lshlrev_b32 v6, 4, v1")
    e("v_add_u32 v6, v6, v4")
    e(f"v_mul_u32_u24 v6, {CSTR}, v6")
    e("v_lshl_add_u32 v6, v5, 4, v6")
    e(f"v_add_u32 v6, {LDS_C}, v6")
    e(f"v_mul_u32_u24 v7, {CSTR}, v4")
    e("v_lshl_add_u32 v7, v5, 4, v7")
    e(f"v_add_u32 v7, {LDS_Q}, v7")
    for i in range(8):
        e(f"v_mov_b32 v{16+i}, 0")
    e("s_waitcnt vmcnt(0)")
    e("s_barrier")
    stamp()
    for t in range(16):
        e(f"ds_read_b128 v[{32+4*(t%2)*3}:{35+4*(t%2)*3}], v6 offset:{64*t}")
        e(f"ds_read_b128 v[{36+4*(t%2)*3}:{39+4*(t%2)*3}], v7 offset:{64*t}")
        e(f"ds_read_b128 v[{40+4*(t%2)*3}:{43+4*(t%2)*3}], v7 offset:{64*t+16*CSTR}")
        e("s_waitcnt lgkmcnt(0)")
        b = 32 + 12 * (t % 2)
        e(f"v_mfma_f32_16x16x32_bf16 v[16:19], v[{b}:{b+3}], v[{b+4}:{b+7}], v[16:19]")
        e(f"v_mfma_f32_16x16x32_bf16 v[20:23], v[{b}:{b+3}], v[{b+8}:{b+11}], v[20:23]")
    e("s_nop 15")
    stamp()
    e("v_max_f32 v24, v16, v17")
    e("v_max3_f32 v24, v24, v18, v19")
    e("v_max_f32 v25, v20, v21")
    e("v_max3_f32 v25, v25, v22, v23")
    e("v_xor_b32 v26, 16, v2")
    e("v_lshlrev_b32 v26, 2, v26")
    e("ds_bpermute_b32 v27, v26, v24")
    e("ds_bpermute_b32 v28, v26, v25")
    e("s_waitcnt lgkmcnt(0)")
    e("v_max_f32 v24, v24, v27")
    e("v_max_f32 v25, v25, v28")
    e("v_xor_b32 v26, 32, v2")
    e("v_lshlrev_b32 v26, 2, v26")
    e("ds_bpermute_b32 v27, v26, v24")
    e("ds_bpermute_b32 v28, v26, v25")
    e("s_waitcnt lgkmcnt(0)")
    e("v_max_f32 v24, v24, v27")
    e("v_max_f32 v25, v25, v28")
    e("v_lshlrev_b32 v26, 7, v1")
    e("v_lshl_add_u32 v26, v4, 2, v26")
    e(f"ds_write_b32 v26, v24 offset:{LDS_ST}")
    e(f"ds_write_b32 v26, v25 offset:{LDS_ST+64}")
    e("s_waitcnt lgkmcnt(0)")
    e("s_barrier")
    e("v_lshlrev_b32 v26, 2, v4")
    for w in range(4):
        e(f"ds_read_b32 v{40+w}, v26 offset:{LDS_ST+128*w}")
        e(f"ds_read_b32 v{44+w}, v26 offset:{LDS_ST+128*w+64}")
    e("s_waitcnt lgkmcnt(0)")
    e("v_max_f32 v24, v40, v41")
    e("v_max3_f32 v24, v24, v42, v43")
    e("v_max_f32 v25, v44, v45")
    e("v_max3_f32 v25, v25, v46, v47")
    C1 = 0x3e0293ee
    e("s_mov_b32 s66, C1VAL")
    for i in range(4):
        e(f"v_sub_f32 v{16+i}, v{16+i}, v24")
        e(f"v_sub_f32 v{20+i}, v{20+i}, v25")
    for i in range(8):
        e(f"v_mul_f32 v{16+i}, s66, v{16+i}")
    for i in range(8):
        e(f"v_exp_f32 v{16+i}, v{16+i}")
    e("s_nop 1")
    e("v_add_f32 v27, v16, v17")
    e("v_add_f32 v28, v18, v19")
    e("v_add_f32 v27, v27, v28")
    e("v_add_f32 v28, v20, v21")
    e("v_add_f32 v29, v22, v23")
    e("v_add_f32 v28, v28, v29")
    e("v_cvt_pk_bf16_f32 v32, v16, v17")
    e("v_cvt_pk_bf16_f32 v33, v18, v19")
    e("v_cvt_pk_bf16_f32 v34, v20, v21")
    e("v_cvt_pk_bf16_f32 v35, v22, v23")
    e(f"v_mul_u32_u24 v36, {PSTR}, v4")
    e("v_lshlrev_b32 v37, 5, v1")
    e("v_add_u32 v36, v36, v37")
    e("v_lshl_add_u32 v36, v5, 3, v36")
    e(f"ds_write_b64 v36, v[32:33] offset:{LDS_P}")
    e(f"ds_write_b64 v36, v[34:35] offset:{LDS_P+16*PSTR}")
    e("v_xor_b32 v26, 16, v2")
    e("v_lshlrev_b32 v26, 2, v26")
    e("ds_bpermute_b32 v29, v26, v27")
    e("ds_bpermute_b32 v30, v26, v28")
    e("s_waitcnt lgkmcnt(0)")
    e("v_add_f32 v27, v27, v29")
    e("v_add_f32 v28, v28, v30")
    e("v_xor_b32 v26, 32, v2")
    e("v_lshlrev_b32 v26, 2, v26")
    e("ds_bpermute_b32 v29, v26, v27")
    e("ds_bpermute_b32 v30, v26, v28")
    e("s_waitcnt lgkmcnt(0)")
    e("v_add_f32 v27, v27, v29")
    e("v_add_f32 v28, v28, v30")
    e("v_lshlrev_b32 v26, 7, v1")
    e("v_lshl_add_u32 v26, v4, 2, v26")
    e(f"ds_write_b32 v26, v27 offset:{LDS_ST+512}")
    e(f"ds_write_b32 v26, v28 offset:{LDS_ST+512+64}")
    e("s_waitcnt lgkmcnt(0)")
    e("s_barrier")
    e("v_lshlrev_b32 v26, 2, v4")
    for w in range(4):
        e(f"ds_read_b32 v{40+w}, v26 offset:{LDS_ST+512+128*w}")
        e(f"ds_read_b32 v{44+w}, v26 offset:{LDS_ST+512+128*w+64}")
    e("s_waitcnt lgkmcnt(0)")
    e("v_add_f32 v40, v40, v41")
    e("v_add_f32 v42, v42, v43")
    e("v_add_f32 v40, v40, v42")
    e("v_add_f32 v44, v44, v45")
    e("v_add_f32 v46, v46, v47")
    e("v_add_f32 v44, v44, v46")
    e("s_lshl_b32 s61, s2, 8")
    e(f"s_add_u32 s61, s61, {AM}")
    e("v_lshl_add_u32 v26, v4, 3, s61")
    e("v_cmp_gt_u32 vcc, 16, v0")
    e("s_and_saveexec_b64 s[58:59], vcc")
    e("v_mov_b32 v41, v40")
    e("v_mov_b32 v40, v24")
    e("v_mov_b32 v45, v44")
    e("v_mov_b32 v44, v25")
    e("buffer_store_dwordx2 v[40:41], v26, s[48:51], 0 offen")
    e("buffer_store_dwordx2 v[44:45], v26, s[48:51], 0 offen offset:128")
    e("s_mov_b64 exec, s[58:59]")
    stamp()
    e("v_and_b32 v4, 31, v2")
    e("v_lshrrev_b32 v5, 5, v2")
    e(f"v_mul_u32_u24 v6, {PSTR}, v4")
    e("v_lshl_add_u32 v6, v5, 4, v6")
    e(f"v_add_u32 v6, {LDS_P}, v6")
    e("v_and_b32 v7, 15, v2")
    e("v_lshrrev_b32 v8, 2, v7")
    e("v_lshl_add_u32 v8, v5, 3, v8")
    e(f"v_mul_u32_u24 v8, {CSTR}, v8")
    e("v_and_b32 v9, 3, v7")
    e("v_lshlrev_b32 v9, 3, v9")
    e("v_bfe_u32 v10, v2, 4, 1")
    e("v_lshl_add_u32 v9, v10, 5, v9")
    e("v_add_u32 v8, v8, v9")
    e("v_lshl_add_u32 v8, v1, 8, v8")
    e(f"v_add_u32 v8, {LDS_C}, v8")
    for i in range(64):
        e(f"v_mov_b32 v{64+i}, 0")
    for j in range(KPW // 16):
        e(f"ds_read_b128 v[12:15], v6 offset:{32*j}")
        for n in range(4):
            e(f"ds_read_b64_tr_b16 v[{16+4*n}:{17+4*n}], v8 offset:{16*j*CSTR + 64*n}")
            e(f"ds_read_b64_tr_b16 v[{18+4*n}:{19+4*n}], v8 offset:{(16*j+4)*CSTR + 64*n}")
        e("s_waitcnt lgkmcnt(0)")
        for n in range(4):
            e(f"v_mfma_f32_32x32x16_bf16 v[{64+16*n}:{79+16*n}], v[12:15], v[{16+4*n}:{19+4*n}], v[{64+16*n}:{79+16*n}]")
    e("s_nop 15")
    e("s_nop 3")
    stamp()
    e("s_lshl_b32 s61, s2, 16")
    e(f"s_add_u32 s61, s61, {AP}")
    e("v_lshlrev_b32 v9, 13, v5")
    e("v_lshl_add_u32 v9, v4, 2, v9")
    e("v_lshl_add_u32 v9, v1, 9, v9")
    e("v_add_u32 v9, s61, v9")
    for n in range(4):
        for i in range(16):
            h = 8 * (i // 4) + (i % 4)
            off = h * 2048 + n * 128
            if off < 4096:
                e(f"buffer_store_dword v{64+16*n+i}, v9, s[48:51], 0 offen offset:{off}")
            else:
                e(f"v_add_u32 v10, {off}, v9")
                e(f"buffer_store_dword v{64+16*n+i}, v10, s[48:51], 0 offen")
    e("s_waitcnt vmcnt(0)")
    stamp()
    stamp_flush(name)
    epilogue(name)

def k4():
    name = "k4_kernel"
    prologue(name, 256)
    e("s_lshr_b32 s57, s2, 3")
    e("s_and_b32 s60, s2, 7")
    srd(44, 24, 4194304)
    e("s_movk_i32 s52, 8192")
    e("s_lshl_b32 s53, s60, 6")
    e("s_lshl_b32 s54, s57, 8")
    e("s_lshl_b32 s55, s60, 14")
    e("s_lshl_b32 s61, s57, 9")
    e("s_add_u32 s55, s55, s61")
    e(f"s_add_u32 s55, s55, {CP}")
    gemv_issue()
    e("v_lshrrev_b32 v1, 6, v0")
    e("v_and_b32 v2, 63, v0")
    e("s_lshl_b32 s61, s57, 3")
    e(f"s_add_u32 s61, s61, {AM}")
    e("v_lshl_add_u32 v3, v2, 8, s61")
    e("buffer_load_dwordx2 v[4:5], v3, s[48:51], 0 offen")
    e("v_add_u32 v3, 16384, v3")
    e("buffer_load_dwordx2 v[6:7], v3, s[48:51], 0 offen")
    e("s_waitcnt vmcnt(0)")
    e("v_max_f32 v8, v4, v6")
    e("s_nop 1")
    for r in (8, 4, 2, 1):
        e(f"v_max_f32_dpp v8, v8, v8 row_ror:{r} row_mask:0xf bank_mask:0xf")
        e("s_nop 1")
    e("v_readlane_b32 s61, v8, 0")
    e("v_readlane_b32 s62, v8, 16")
    e("v_readlane_b32 s63, v8, 32")
    e("v_readlane_b32 s64, v8, 48")
    e("s_nop 1")
    e("v_mov_b32 v8, s61")
    e("v_max_f32 v8, s62, v8")
    e("v_max_f32 v8, s63, v8")
    e("v_max_f32 v8, s64, v8")
    e("s_mov_b32 s66, C1VAL")
    e("v_sub_f32 v4, v4, v8")
    e("v_sub_f32 v6, v6, v8")
    e("v_mul_f32 v4, s66, v4")
    e("v_mul_f32 v6, s66, v6")
    e("v_exp_f32 v4, v4")
    e("v_exp_f32 v6, v6")
    e("s_nop 1")
    e("v_mul_f32 v9, v4, v5")
    e("v_fmac_f32 v9, v6, v7")
    e("s_nop 1")
    for r in (8, 4, 2, 1):
        e(f"v_add_f32_dpp v9, v9, v9 row_ror:{r} row_mask:0xf bank_mask:0xf")
        e("s_nop 1")
    e("v_readlane_b32 s61, v9, 0")
    e("v_readlane_b32 s62, v9, 16")
    e("v_readlane_b32 s63, v9, 32")
    e("v_readlane_b32 s64, v9, 48")
    e("s_nop 1")
    e("v_mov_b32 v9, s61")
    e("v_add_f32 v9, s62, v9")
    e("v_add_f32 v9, s63, v9")
    e("v_add_f32 v9, s64, v9")
    e("v_rcp_f32 v9, v9")
    e("s_nop 1")
    e("v_mul_f32 v4, v4, v9")
    e("v_mul_f32 v6, v6, v9")
    e("v_readfirstlane_b32 s60, v1")
    e("s_and_b32 s61, s2, 7")
    e("s_lshl_b32 s61, s61, 8")
    e("s_lshl_b32 s62, s57, 11")
    e("s_add_u32 s61, s61, s62")
    e(f"s_add_u32 s61, s61, {AP}")
    e("s_lshl_b32 s62, s60, 21")
    e("s_add_u32 s61, s61, s62")
    e("v_lshl_add_u32 v3, v2, 2, s61")
    for i in range(32):
        e(f"buffer_load_dword v{16+i}, v3, s[48:51], 0 offen")
        if i < 31:
            e("v_add_u32 v3, 0x10000, v3")
    e("s_lshl_b32 s62, s60, 5")
    e("s_and_b32 s63, s62, 63")
    e("s_cmp_ge_u32 s60, 2")
    e("v_cndmask_b32 v10, v4, v6, scc" if False else "s_cselect_b64 vcc, -1, 0")
    e("s_nop 1")
    e("v_cndmask_b32 v10, v4, v6, vcc")
    e("v_mov_b32 v11, 0")
    e("s_waitcnt vmcnt(0)")
    for i in range(32):
        e(f"s_add_u32 s64, s63, {i}")
        e("s_nop 0")
        e("v_readlane_b32 s65, v10, s64")
        e("s_nop 1")
        e(f"v_fmac_f32 v11, s65, v{16+i}")
    e("v_lshlrev_b32 v3, 2, v0")
    e("ds_write_b32 v3, v11 offset:16384")
    e("s_waitcnt lgkmcnt(0)")
    e("s_barrier")
    e("v_cmp_gt_u32 vcc, 64, v0")
    e("s_and_saveexec_b64 s[58:59], vcc")
    e("ds_read_b32 v12, v3 offset:16384")
    e("ds_read_b32 v13, v3 offset:16640")
    e("ds_read_b32 v14, v3 offset:16896")
    e("ds_read_b32 v15, v3 offset:17152")
    e("s_waitcnt lgkmcnt(0)")
    e("v_add_f32 v12, v12, v13")
    e("v_add_f32 v14, v14, v15")
    e("v_add_f32 v12, v12, v14")
    e("ds_write_b32 v3, v12")
    e("s_mov_b64 exec, s[58:59]")
    gemv_finish(name)
    epilogue(name)

def k5():
    name = "k5_kernel"
    prologue(name, 256)
    e("s_and_b32 s62, s2, 3")
    e("s_lshr_b32 s61, s2, 2")
    srd(44, 26, 4194304)
    e("s_movk_i32 s52, 1024")
    e("s_lshl_b32 s53, s61, 6")
    e("s_lshl_b32 s54, s62, 8")
    e("s_lshl_b32 s55, s61, 11")
    e("s_lshl_b32 s63, s62, 9")
    e("s_add_u32 s55, s55, s63")
    e(f"s_add_u32 s55, s55, {OPP}")
    gemv_issue()
    e("v_add_u32 v5, s53, v0")
    e("v_lshlrev_b32 v6, 2, v5")
    e(f"v_add_u32 v6, {CP}, v6")
    for p in range(8):
        e(f"buffer_load_dword v{8+p}, v6, s[48:51], 0 offen")
        if p < 7:
            e("v_add_u32 v6, 16384, v6")
    e("s_waitcnt vmcnt(0)")
    for p in range(1, 8):
        e(f"v_add_f32 v8, v8, v{8+p}")
    bf16_round(8, 8)
    e("v_lshlrev_b32 v4, 2, v0")
    e("v_cmp_gt_u32 vcc, 64, v0")
    e("s_and_saveexec_b64 s[58:59], vcc")
    e("ds_write_b32 v4, v8")
    e("s_mov_b64 exec, s[58:59]")
    gemv_finish(name)
    epilogue(name)

def k6():
    name = "k6_kernel"
    prologue(name, 2)
    srd(44, 16, 1024)
    srd(60, 36, 1024)
    srd(64, 38, 1024)
    e("v_and_b32 v2, 63, v0")
    e("v_lshlrev_b32 v3, 4, v2")
    e("buffer_load_dwordx4 v[4:7], v3, s[44:47], 0 offen")
    e("buffer_load_dwordx4 v[8:11], v3, s[60:63], 0 offen")
    e("s_lshl_b32 s3, s2, 8")
    e("v_add_u32 v1, s3, v0")
    e("v_lshlrev_b32 v12, 2, v1")
    e(f"v_add_u32 v13, {OPP}, v12")
    for p in range(64):
        e(f"buffer_load_dword v{32+p}, v13, s[48:51], 0 offen" + (f" offset:{2048*(p%2)}" if p % 2 else ""))
        if p % 2 == 1 and p < 63:
            e("v_add_u32 v13, 4096, v13")
    e(f"v_add_u32 v13, {BP}, v12")
    e("s_waitcnt vmcnt(40)")
    for p in range(22):
        e(f"buffer_load_dword v{100+p}, v13, s[48:51], 0 offen" + (f" offset:{2048*(p%2)}" if p % 2 else ""))
        if p % 2 == 1 and p < 21:
            e("v_add_u32 v13, 4096, v13")
    e("v_mov_b32 v14, 0")
    for d in range(4):
        e(f"v_lshlrev_b32 v15, 16, v{4+d}")
        e(f"v_lshlrev_b32 v16, 16, v{8+d}")
        e("v_mul_f32 v15, v15, v16")
        bf16_round(15, 15)
        e("v_add_f32 v14, v14, v15")
        e(f"v_and_b32 v15, 0xffff0000, v{4+d}")
        e(f"v_and_b32 v16, 0xffff0000, v{8+d}")
        e("v_mul_f32 v15, v15, v16")
        bf16_round(15, 15)
        e("v_add_f32 v14, v14, v15")
    e("s_nop 1")
    for r in (8, 4, 2, 1):
        e(f"v_add_f32_dpp v14, v14, v14 row_ror:{r} row_mask:0xf bank_mask:0xf")
        e("s_nop 1")
    e("v_readlane_b32 s4, v14, 0")
    e("v_readlane_b32 s5, v14, 16")
    e("v_readlane_b32 s6, v14, 32")
    e("v_readlane_b32 s7, v14, 48")
    e("s_nop 1")
    e("v_mov_b32 v14, s4")
    e("v_add_f32 v14, s5, v14")
    e("v_add_f32 v14, s6, v14")
    e("v_add_f32 v14, s7, v14")
    bf16_round(14, 14)
    e("v_mul_f32 v14, 0xbfb8aa3b, v14")
    e("v_exp_f32 v14, v14")
    e("s_nop 0")
    e("v_add_f32 v14, 1.0, v14")
    e("v_rcp_f32 v14, v14")
    e("s_nop 0")
    bf16_round(14, 14)
    e("s_waitcnt vmcnt(0)")
    for st in (32, 16, 8, 4, 2, 1):
        for i in range(st):
            e(f"v_add_f32 v{32+i}, v{32+i}, v{32+i+st}")
    bf16_round(32, 32)
    for p in range(1, 22):
        e(f"v_add_f32 v100, v100, v{100+p}")
    e("v_mov_b32 v40, v100")
    bf16_round(40, 40)
    e("v_mul_f32 v32, v14, v32")
    bf16_round(32, 32)
    e("v_sub_f32 v15, 1.0, v14")
    bf16_round(15, 15)
    e("v_mul_f32 v40, v15, v40")
    bf16_round(40, 40)
    e("v_add_f32 v32, v32, v40")
    e("v_cvt_pk_bf16_f32 v32, v32, v32")
    e("v_lshlrev_b32 v12, 1, v1")
    e("buffer_store_short v32, v12, s[64:67], 0 offen")
    epilogue(name)

import struct, math
c1 = (128 ** -0.5) * math.log2(math.e)
C1HEX = "0x%08x" % struct.unpack("<I", struct.pack("<f", c1))[0]

hdr = []
hdr.append("; @launch kernel=ka_kernel grid=(432,1,1) block=(256,1,1) lds=16384")
hdr.append(f"; @launch kernel=k3_kernel grid=({NSPLIT+88},1,1) block=(256,1,1) lds={LDS_K3}")
hdr.append("; @launch kernel=k4_kernel grid=(256,1,1) block=(256,1,1) lds=20480")
hdr.append("; @launch kernel=k5_kernel grid=(256,1,1) block=(256,1,1) lds=16384")
hdr.append("; @launch kernel=k6_kernel grid=(2,1,1) block=(256,1,1) lds=0")
hdr.append('.amdgcn_target "amdgcn-amd-amdhsa--gfx950"')
hdr.append(".text")
ka(); k3(); k4(); k5(); k6()
L.append('.section .rodata,"a"')
for n in ("ka_kernel", "k3_kernel", "k4_kernel", "k5_kernel", "k6_kernel"):
    L.append(".p2align 6")
    kd(n)
txt = "\n".join(hdr + L) + "\n"
txt = txt.replace("C1VAL", C1HEX)
open(OUT, "w").write(txt)
print("wrote", OUT, len(txt))
```
